```python
import torch

def _softmax(x, axis=-1):
    return torch.softmax(x, dim=axis)
def _gelu(x):
    return torch.nn.functional.gelu(x, approximate="tanh")
def _silu(x):
    return torch.nn.functional.silu(x)
def _sigmoid(x):
    return torch.sigmoid(x)
def _layernorm(x, axis=-1, eps=1e-5):
    m = x.mean(dim=axis, keepdim=True)
    v = x.var(dim=axis, keepdim=True, unbiased=False)
    return (x - m) / torch.sqrt(v + eps)
def _scatter_add(tgt, idx, src, axis=0):
    return tgt.clone().index_add_(axis, idx, src)
def _segment_sum(src, seg, n):
    out = torch.zeros((n,) + src.shape[1:], dtype=src.dtype)
    return out.index_add_(0, seg, src)
def _pad(x, pw):
    flat = tuple(v for pair in reversed(pw) for v in pair)
    return torch.nn.functional.pad(x, flat)

kernel_name = 'standalone__gqa_softmax__sampling'

def setup_inputs():

    _w = (lambda a: (lambda t: t.to(torch.bfloat16) if t.is_floating_point() else t)(torch.as_tensor(a)))
    B, Hq, Hkv, Sq, Sk, D = 8, 16, 8, 8, 8192, 256
    return {
        "q": _w((lambda *s: torch.randn(*s, dtype=torch.bfloat16) * 0.8)(B, Hq, Sq, D)),
        "k": _w((lambda *s: torch.randn(*s, dtype=torch.bfloat16) * 0.8)(B, Hkv, Sk, D)),
        "v": _w((lambda *s: torch.randn(*s, dtype=torch.bfloat16) * 0.05)(B, Hkv, Sk, D)),
    }

def reference(q, k, v):
    B, Hq, Sq, D = q.shape
    Hkv = k.shape[1]
    rep = Hq // Hkv
    k = (lambda x, n, axis: torch.repeat_interleave(x, n, dim=axis))(k, rep, axis=1)
    v = (lambda x, n, axis: torch.repeat_interleave(x, n, dim=axis))(v, rep, axis=1)
    scale = D ** -0.5
    scores = torch.einsum("bhqd,bhkd->bhqk", q, k) * scale
    p = _softmax(scores, axis=-1)
    return torch.einsum("bhqk,bhkd->bhqd", p, v)
```

```python
import sys, math, argparse
NAME = "standalone__gqa_softmax__sampling_kernel"

HEADER = """; Kernarg layout for this problem (48 bytes, ptrs only, base s[0:1]):
;   offset   0: d_in[0] q  shape=(8, 16, 8, 256) dtype=bfloat16
;   offset   8: d_in[1] k  shape=(8, 8, 8192, 256) dtype=bfloat16
;   offset  16: d_in[2] v  shape=(8, 8, 8192, 256) dtype=bfloat16
;   offset  24: d_out     shape=(8, 16, 8, 256) dtype=bfloat16
"""

class Gen:
    def __init__(self, NK=1, NV=1, flags="nt", interleave=False, vsplit=False, ksplit=False,
                 mapping="lo", stamp=False, waves=4, pkmul=True, kflags=None, vflags=None, proto="A"):
        self.NK, self.NV = NK, NV
        self.kflags = flags if kflags is None else kflags
        self.vflags = flags if vflags is None else vflags
        self.interleave, self.vsplit, self.ksplit = interleave, vsplit, ksplit
        self.mapping, self.stamp, self.waves, self.pkmul = mapping, stamp, waves, pkmul
        self.proto = proto
        self.L = []
        self.q = []
        self.NT = 2048 // waves // 32
        self.vK0, self.vK1 = 1, 2
        self.vV = 4
        self.vM, self.vL = 8, 9
        self.vAl = 10
        self.vT0, self.vT1, self.vT2 = 12, 13, 14
        self.vMc = 15
        self.vS = 16
        self.vP = 24
        self.vLane = 28
        self.vA0, self.vA1, self.vA2 = 29, 30, 31
        self.vT = 32
        self.vO = 48
        self.vVb = 112
        self.nv = self.vVb + 64 * NV
        assert self.nv <= 256
        self.aQ = 0
        self.aK = 32
        self.na = 32 + 64 * NK
        self.sK, self.sV, self.sQ, self.sOut, self.sWs, self.sDbg = 16, 20, 24, 28, 32, 36
        self.sW, self.sBH, self.sSp = 40, 41, 42
        self.sKo, self.sVo, self.sCnt = 43, 44, 45
        self.sC, self.sLo, self.sHi = 46, 47, 48
        self.sA, self.sB, self.sD = 49, 50, 51
        self.sO1, self.sO2, self.sO3 = 52, 53, 54
        self.sS1, self.sS2, self.sS3 = 55, 56, 57
        self.sT = 60
    def a(self, s):
        for x in s.split("\n"):
            x = x.strip()
            if x: self.L.append(x)
    def srd(self, s): return f"s[{s}:{s+3}]"
    def vm(self, tag, text):
        self.a(text); self.q.append(tag)
    def wait(self, tags):
        idx = max((i for i, t in enumerate(self.q) if t in tags), default=-1)
        if idx < 0: return
        n = len(self.q) - 1 - idx
        assert n <= 63, n
        self.a(f"s_waitcnt vmcnt({n})")
        self.q = self.q[idx+1:]
    def kreg(self, buf, t, j): return self.aK + buf*64 + t*32 + j*4
    def vreg(self, buf, t, r, h): return self.vVb + buf*64 + h*32 + (t*4 + r)*4
    def loadK(self, n, t):
        buf = n % self.NK
        for j in range(8):
            r = self.kreg(buf, t, j)
            self.vm(("K", n, t), f"buffer_load_dwordx4 a[{r}:{r+3}], v{self.vK0+t}, {self.srd(self.sK)}, s{self.sKo} offen offset:{j*64} {self.kflags}")
    def loadV(self, n, halves):
        buf = n % self.NV
        for t in range(2):
            for r in range(4):
                for h in halves:
                    g = self.vreg(buf, t, r, h)
                    self.vm(("V", n, h), f"buffer_load_dwordx4 v[{g}:{g+3}], v{self.vV + 2*t + (r>>1)}, {self.srd(self.sV)}, s{self.sVo} offen offset:{(r&1)*2048 + h*256} {self.vflags}")
    def tile(self, n):
        a = self.a
        kb, vb = n % self.NK, n % self.NV
        doK, doV = n + self.NK < self.NT, n + self.NV < self.NT
        S = self.vS
        step = self.step
        def qk(t):
            for j in range(8):
                k = self.kreg(kb, t, j); c = "0" if j == 0 else f"v[{S+4*t}:{S+4*t+3}]"
                a(f"v_mfma_f32_16x16x32_bf16 v[{S+4*t}:{S+4*t+3}], a[{k}:{k+3}], a[{self.aQ+4*j}:{self.aQ+4*j+3}], {c}")
        if self.ksplit:
            self.wait({("K", n, 0), "Q"}); qk(0)
            if doK: self.loadK(n + self.NK, 0)
            self.wait({("K", n, 1)}); qk(1)
            if doK: self.loadK(n + self.NK, 1)
        else:
            self.wait({("K", n, 0), ("K", n, 1), "Q"})
            for j in range(8):
                for t in range(2):
                    k = self.kreg(kb, t, j); c = "0" if j == 0 else f"v[{S+4*t}:{S+4*t+3}]"
                    a(f"v_mfma_f32_16x16x32_bf16 v[{S+4*t}:{S+4*t+3}], a[{k}:{k+3}], a[{self.aQ+4*j}:{self.aQ+4*j+3}], {c}")
            if doK:
                self.loadK(n + self.NK, 0); self.loadK(n + self.NK, 1)
        if doK: a(f"s_add_u32 s{self.sKo}, s{self.sKo}, {step}")
        else: a("s_nop 7")
        T0, T1, T2, M, Lr, Al, Mc = self.vT0, self.vT1, self.vT2, self.vM, self.vL, self.vAl, self.vMc
        a(f"""v_max3_f32 v{T0}, v{S}, v{S+1}, v{S+2}
        v_max3_f32 v{T1}, v{S+3}, v{S+4}, v{S+5}
        v_max3_f32 v{T0}, v{T0}, v{S+6}, v{S+7}
        v_max3_f32 v{T0}, v{T0}, v{T1}, v{M}
        v_mov_b32 v{T1}, v{T0}
        s_nop 1
        v_permlane16_swap_b32 v{T0}, v{T1}
        v_max_f32 v{T0}, v{T0}, v{T1}
        v_mov_b32 v{T1}, v{T0}
        s_nop 1
        v_permlane32_swap_b32 v{T0}, v{T1}
        v_max_f32 v{T0}, v{T0}, v{T1}
        v_sub_f32 v{T2}, v{M}, v{T0}
        v_mul_f32 v{Mc}, s{self.sC}, v{T0}
        v_mul_f32 v{T2}, s{self.sC}, v{T2}
        v_mov_b32 v{M}, v{T0}
        v_exp_f32 v{Al}, v{T2}""")
        for i in range(8): a(f"v_fma_f32 v{S+i}, v{S+i}, s{self.sC}, -v{Mc}")
        for i in range(8): a(f"v_exp_f32 v{S+i}, v{S+i}")
        O = self.vO
        if self.pkmul:
            for i in range(0, 64, 2): a(f"v_pk_mul_f32 v[{O+i}:{O+i+1}], v[{O+i}:{O+i+1}], v[{Al}:{Al+1}] op_sel_hi:[1,0]")
        else:
            for i in range(64): a(f"v_mul_f32 v{O+i}, v{Al}, v{O+i}")
        for j in range(4): a(f"v_cvt_pk_bf16_f32 v{self.vP+j}, v{S+2*j}, v{S+2*j+1}")
        a(f"""v_add_f32 v{T0}, v{S}, v{S+1}
        v_add_f32 v{T1}, v{S+2}, v{S+3}
        v_add_f32 v{T2}, v{S+4}, v{S+5}
        v_add_f32 v{S+6}, v{S+6}, v{S+7}
        v_add_f32 v{T0}, v{T0}, v{T1}
        v_add_f32 v{T2}, v{T2}, v{S+6}
        v_add_f32 v{T0}, v{T0}, v{T2}
        v_fma_f32 v{Lr}, v{Lr}, v{Al}, v{T0}""")
        def perms(p):
            h, x = p >> 2, p & 3
            T = self.vT + (p & 1) * 8
            for j in range(4):
                t, r = j >> 1, 2 * (j & 1)
                lo, hi = self.vreg(vb, t, r, h) + x, self.vreg(vb, t, r + 1, h) + x
                a(f"v_perm_b32 v{T+j}, v{hi}, v{lo}, s{self.sLo}")
                a(f"v_perm_b32 v{T+4+j}, v{hi}, v{lo}, s{self.sHi}")
        def pv(p):
            h, x = p >> 2, p & 3
            T = self.vT + (p & 1) * 8
            for o in range(2):
                d = O + (h * 8 + 2 * x + o) * 4
                a(f"v_mfma_f32_16x16x32_bf16 v[{d}:{d+3}], v[{T+4*o}:{T+4*o+3}], v[{self.vP}:{self.vP+3}], v[{d}:{d+3}]")
        if self.vsplit: self.wait({("V", n, 0)})
        else: self.wait({("V", n, 0), ("V", n, 1)})
        perms(0)
        for p in range(8):
            if p + 1 < 8:
                if p + 1 == 4 and self.vsplit:
                    if doV: self.loadV(n + self.NV, [0])
                    self.wait({("V", n, 1)})
                perms(p + 1)
            else:
                if doV: self.loadV(n + self.NV, [1] if self.vsplit else [0, 1])
                else: a("s_nop 1")
            pv(p)
        if doV: a(f"s_add_u32 s{self.sVo}, s{self.sVo}, {step}")

    def stampw(self, slot):
        if not self.stamp: return
        a = self.a
        a(f"s_memrealtime s[{self.sT}:{self.sT+1}]\ns_waitcnt lgkmcnt(0)")
        a(f"v_writelane_b32 v3, s{self.sT}, {slot}")

    def build(self):
        a = self.a
        W = self.waves
        keys_w = 2048 // W
        lds = W * 16384 + W * 512 + 64
        self.L.append(HEADER + f"; @launch grid=(256,1,1) block=({64*W},1,1) lds={lds}")
        a('.amdgcn_target "amdgcn-amd-amdhsa--gfx950"\n.text')
        a(f".globl {NAME}\n.p2align 8\n.type {NAME},@function\n{NAME}:")
        a("s_cmp_ge_u32 s2, 256\ns_cbranch_scc1 L_end")
        a("s_load_dwordx8 s[4:11], s[0:1], 0\ns_load_dwordx4 s[12:15], s[0:1], 32")
        if self.stamp:
            a(f"s_memrealtime s[{self.sT+2}:{self.sT+3}]")
        ln = self.vLane
        a(f"v_lshrrev_b32 v1, 6, v0\nv_and_b32 v{ln}, 63, v0")
        a(f"v_readfirstlane_b32 s{self.sW}, v1")
        if self.mapping == "lo":
            a(f"s_lshr_b32 s{self.sBH}, s2, 2\ns_and_b32 s{self.sSp}, s2, 3")
        else:
            a(f"s_and_b32 s{self.sBH}, s2, 63\ns_lshr_b32 s{self.sSp}, s2, 6")
        a(f"""v_and_b32 v{self.vT0}, 15, v{ln}
        v_lshrrev_b32 v{self.vT1}, 4, v{ln}
        v_and_b32 v{self.vT2}, 3, v{ln}
        v_bfe_u32 v{self.vMc}, v{ln}, 2, 2
        v_lshl_add_u32 v{self.vT2}, v{self.vT2}, 2, v{self.vMc}
        v_lshlrev_b32 v{self.vK0}, 9, v{self.vT2}
        v_lshl_add_u32 v{self.vK0}, v{self.vT1}, 4, v{self.vK0}
        v_add_u32 v{self.vK1}, 8192, v{self.vK0}
        v_lshlrev_b32 v{self.vV}, 9, v{self.vT1}
        v_lshl_add_u32 v{self.vV}, v{self.vT0}, 4, v{self.vV}
        v_add_u32 v{self.vV+1}, 4096, v{self.vV}
        v_add_u32 v{self.vV+2}, 8192, v{self.vV}
        v_add_u32 v{self.vV+3}, 12288, v{self.vV}
        v_lshlrev_b32 v{self.vA0}, 9, v{self.vT0}
        v_lshl_add_u32 v{self.vA0}, v{self.vT1}, 4, v{self.vA0}""")
        a(f"s_lshl_b32 s{self.sA}, s{self.sBH}, 22\ns_lshl_b32 s{self.sB}, s{self.sSp}, 20\ns_add_u32 s{self.sA}, s{self.sA}, s{self.sB}")
        if self.interleave:
            a(f"s_lshl_b32 s{self.sB}, s{self.sW}, 14")
            self.step = W * 16384
            a(f"s_sub_u32 s{self.sD}, {1<<20}, s{self.sB}")
        else:
            a(f"s_mul_i32 s{self.sB}, s{self.sW}, {keys_w*512}")
            self.step = 16384
            a(f"s_mov_b32 s{self.sD}, {keys_w*512}")
        a(f"s_add_u32 s{self.sA}, s{self.sA}, s{self.sB}")
        a(f"s_mov_b32 s{self.sKo}, 0\ns_mov_b32 s{self.sVo}, 0")
        a(f"s_lshl_b32 s{self.sB}, s{self.sBH}, 13")
        a("s_waitcnt lgkmcnt(0)")
        K, V, Q = self.sK, self.sV, self.sQ
        a(f"s_add_u32 s{K}, s6, s{self.sA}\ns_addc_u32 s{K+1}, s7, 0\ns_mov_b32 s{K+2}, s{self.sD}\ns_mov_b32 s{K+3}, 0x20000")
        self.loadK(0, 0); self.loadK(0, 1)
        a(f"s_add_u32 s{self.sKo}, s{self.sKo}, {self.step}")
        a(f"s_add_u32 s{Q}, s4, s{self.sB}\ns_addc_u32 s{Q+1}, s5, 0\ns_mov_b32 s{Q+2}, 8192\ns_mov_b32 s{Q+3}, 0x20000")
        for j in range(8):
            self.vm("Q", f"buffer_load_dwordx4 a[{self.aQ+4*j}:{self.aQ+4*j+3}], v{self.vA0}, {self.srd(Q)}, 0 offen offset:{j*64}")
        a(f"s_add_u32 s{V}, s8, s{self.sA}\ns_addc_u32 s{V+1}, s9, 0\ns_mov_b32 s{V+2}, s{self.sD}\ns_mov_b32 s{V+3}, 0x20000")
        def vfull(n):
            if self.vsplit: self.loadV(n, [0]); self.loadV(n, [1])
            else: self.loadV(n, [0, 1])
            a(f"s_add_u32 s{self.sVo}, s{self.sVo}, {self.step}")
        vfull(0)
        for d in range(1, max(self.NK, self.NV)):
            if d < self.NK:
                self.loadK(d, 0); self.loadK(d, 1)
                a(f"s_add_u32 s{self.sKo}, s{self.sKo}, {self.step}")
            if d < self.NV: vfull(d)
        Ou, Ws, Db = self.sOut, self.sWs, self.sDbg
        a(f"s_add_u32 s{Ou}, s10, s{self.sB}\ns_addc_u32 s{Ou+1}, s11, 0\ns_mov_b32 s{Ou+2}, 8192\ns_mov_b32 s{Ou+3}, 0x20000")
        a(f"s_mov_b32 s{Ws}, s14\ns_mov_b32 s{Ws+1}, s15\ns_mov_b32 s{Ws+2}, {16<<20}\ns_mov_b32 s{Ws+3}, 0x20000")
        a(f"s_mov_b32 s{Db}, s12\ns_mov_b32 s{Db+1}, s13\ns_mov_b32 s{Db+2}, 256\ns_mov_b32 s{Db+3}, 0x20000")
        a(f"s_mov_b32 s{self.sC}, 0x3db8aa3b")
        a(f"s_mov_b32 s{self.sLo}, 0x05040100\ns_mov_b32 s{self.sHi}, 0x07060302")
        for i in range(64): a(f"v_mov_b32 v{self.vO+i}, 0")
        a(f"v_mov_b32 v{self.vM}, 0xff800000\nv_mov_b32 v{self.vL}, 0\nv_mov_b32 v{self.vAl+1}, 0")
        if self.stamp:
            a(f"v_mov_b32 v3, 0\ns_nop 1\nv_writelane_b32 v3, s{self.sT+2}, 0")
            self.stampw(1)
        U = math.lcm(self.NK, self.NV) if hasattr(math, "lcm") else self.NK * self.NV // math.gcd(self.NK, self.NV)
        NT = self.NT
        pre = U
        peel = max(self.NK, self.NV)
        while (NT - pre - peel) % U: peel += 1
        iters = (NT - pre - peel) // U
        for n in range(pre): self.tile(n)
        if self.stamp: self.stampw(2)
        q0 = [t for t in self.q]
        a(f"s_mov_b32 s{self.sCnt}, {iters}")
        a(".p2align 6\nL_loop:")
        for n in range(pre, pre + U): self.tile(n)
        q1 = [(t[0], t[1] - U, t[2]) for t in self.q]
        assert q0 == q1, (q0, q1)
        a(f"s_sub_u32 s{self.sCnt}, s{self.sCnt}, 1\ns_cmp_lg_u32 s{self.sCnt}, 0\ns_cbranch_scc1 L_loop")
        shift = (iters - 1) * U
        self.q = [(t[0], t[1] + shift, t[2]) for t in self.q]
        if self.stamp: self.stampw(3)
        for n in range(pre + iters * U, NT): self.tile(n)
        if self.stamp: self.stampw(4)
        assert not self.q
        self.epilogue()
        a("L_end:\ns_endpgm")
        nfv = 256 + self.na
        a(f""".section .rodata,"a"
.p2align 6
.amdhsa_kernel {NAME}
.amdhsa_next_free_vgpr {nfv}
.amdhsa_next_free_sgpr 72
.amdhsa_accum_offset 256
.amdhsa_group_segment_fixed_size 0
.amdhsa_kernarg_size 48
.amdhsa_user_sgpr_count 2
.amdhsa_user_sgpr_kernarg_segment_ptr 1
.amdhsa_system_sgpr_workgroup_id_x 1
.amdhsa_float_denorm_mode_32 3
.end_amdhsa_kernel""")
        return "\n".join(self.L) + "\n"

    def epilogue(self):
        a = self.a
        W = self.waves
        assert W == 4
        T0, T1, T2, M, Lr, ln = self.vT0, self.vT1, self.vT2, self.vM, self.vL, self.vLane
        O = self.vO; R = self.vVb
        STAT = W * 16384; TICK = STAT + W * 512
        A0, A1, A2 = self.vA0, self.vA1, self.vA2
        a(f"""v_mov_b32 v{T1}, v{Lr}
        s_nop 1
        v_permlane16_swap_b32 v{Lr}, v{T1}
        v_add_f32 v{Lr}, v{Lr}, v{T1}
        v_mov_b32 v{T1}, v{Lr}
        s_nop 1
        v_permlane32_swap_b32 v{Lr}, v{T1}
        v_add_f32 v{Lr}, v{Lr}, v{T1}
        s_lshl_b32 s{self.sA}, s{self.sW}, 14
        v_lshl_add_u32 v{A0}, v{ln}, 4, s{self.sA}
        s_lshl_b32 s{self.sA}, s{self.sW}, 9
        s_add_u32 s{self.sA}, s{self.sA}, {STAT}
        v_lshl_add_u32 v{A1}, v{ln}, 3, s{self.sA}
        ds_write_b64 v{A1}, v[{M}:{M+1}]""")
        for u in range(16): a(f"ds_write_b128 v{A0}, v[{O+4*u}:{O+4*u+3}] offset:{u*1024}")
        a(f"""s_lshl_b32 s{self.sA}, s{self.sW}, 12
        v_lshl_add_u32 v{A0}, v{ln}, 4, s{self.sA}
        s_mov_b32 s{self.sA}, {STAT}
        v_lshl_add_u32 v{A1}, v{ln}, 3, s{self.sA}
        s_waitcnt lgkmcnt(0)
        s_barrier""")
        St = self.vS
        for w in range(4): a(f"ds_read_b64 v[{St+2*w}:{St+2*w+1}], v{A1} offset:{w*512}")
        for w in range(4):
            if w == 2: a("s_waitcnt lgkmcnt(8)"); self.factors(St, 4, self.vT)
            for u in range(4):
                r = R + w*16 + u*4
                a(f"ds_read_b128 v[{r}:{r+3}], v{A0} offset:{w*16384 + u*1024}")
        F = self.vT
        a(f"""s_lshl_b32 s{self.sA}, s{self.sBH}, 4
        s_add_u32 s{self.sA}, s{self.sA}, s{self.sW}""")
        for i, (so, ss) in enumerate([(self.sB, self.sD), (self.sO1, self.sS1), (self.sO2, self.sS2), (self.sO3, self.sS3)]):
            a(f"""s_xor_b32 s{ss}, s{self.sSp}, {i}
            s_lshl_b32 s{ss}, s{ss}, 2
            s_add_u32 s{ss}, s{ss}, s{self.sA}
            s_lshl_b32 s{so}, s{ss}, 12
            s_lshl_b32 s{ss}, s{ss}, 9
            s_add_u32 s{ss}, s{ss}, {4<<20}""")
        a(f"v_lshlrev_b32 v{A0}, 4, v{ln}\nv_lshlrev_b32 v{A1}, 3, v{ln}")
        a("s_waitcnt lgkmcnt(12)")
        for i in range(16): a(f"v_mul_f32 v{O+i}, v{F}, v{R+i}")
        for w in range(1, 4):
            a(f"s_waitcnt lgkmcnt({12-4*w})")
            for i in range(16): a(f"v_fmac_f32 v{O+i}, v{F+w}, v{R+16*w+i}")
        if self.stamp: self.stampw(5)
        Ws = self.srd(self.sWs)
        for u in range(4): a(f"buffer_store_dwordx4 v[{O+4*u}:{O+4*u+3}], v{A0}, {Ws}, s{self.sB} offen offset:{u*1024} sc1")
        a(f"buffer_store_dwordx2 v[{M}:{M+1}], v{A1}, {Ws}, s{self.sD} offen sc1")
        a(f"""s_waitcnt vmcnt(0)
        s_barrier
        s_cmp_lg_u32 s{self.sW}, 0
        s_cbranch_scc1 L_notw0
        s_lshl_b32 s{self.sA}, s{self.sBH}, 2
        v_mov_b32 v{T0}, s{self.sA}
        v_mov_b32 v{T1}, 1
        v_mov_b32 v{T2}, {TICK}
        s_mov_b64 exec, 1
        buffer_atomic_add v{T1}, v{T0}, {self.srd(self.sDbg)}, 0 offen sc0
        s_waitcnt vmcnt(0)
        ds_write_b32 v{T2}, v{T1}
        s_mov_b64 exec, -1
        s_waitcnt lgkmcnt(0)
        L_notw0:
        s_barrier
        v_mov_b32 v{T2}, {TICK}
        ds_read_b32 v{T1}, v{T2}
        s_waitcnt lgkmcnt(0)
        v_readfirstlane_b32 s{self.sA}, v{T1}""")
        if self.stamp: self.stampw(6)
        a(f"""s_cmp_lg_u32 s{self.sA}, 3
        s_cbranch_scc1 L_done""")
        a(f"v_mov_b32 v{St}, v{M}\nv_mov_b32 v{St+1}, v{Lr}")
        for i, ss in enumerate([self.sS1, self.sS2, self.sS3]):
            a(f"buffer_load_dwordx2 v[{St+2+2*i}:{St+3+2*i}], v{A1}, {Ws}, s{ss} offen sc1")
        for i, so in enumerate([self.sO1, self.sO2, self.sO3]):
            for u in range(4):
                r = R + i*16 + u*4
                a(f"buffer_load_dwordx4 v[{r}:{r+3}], v{A0}, {Ws}, s{so} offen offset:{u*1024} sc1")
        a(f"""v_and_b32 v{T0}, 15, v{ln}
        v_lshrrev_b32 v{T1}, 4, v{ln}
        v_lshlrev_b32 v{A2}, 9, v{T0}
        v_lshl_add_u32 v{A2}, v{T1}, 6, v{A2}
        s_lshr_b32 s{self.sA}, s{self.sW}, 1
        s_lshl_b32 s{self.sA}, s{self.sA}, 8
        s_and_b32 s{self.sB}, s{self.sW}, 1
        s_lshl_b32 s{self.sB}, s{self.sB}, 3
        s_add_u32 s{self.sA}, s{self.sA}, s{self.sB}
        s_waitcnt vmcnt(12)""")
        self.factors(St, 4, F, sym=True)
        a(f"v_rcp_f32 v{T0}, v{Lr}\ns_nop 0")
        for w in range(4): a(f"v_mul_f32 v{F+w}, v{F+w}, v{T0}")
        for i in range(16): a(f"v_mul_f32 v{O+i}, v{F}, v{O+i}")
        a("s_waitcnt vmcnt(8)")
        for i in range(16): a(f"v_mul_f32 v{R+i}, v{F+1}, v{R+i}")
        for i in range(16): a(f"v_add_f32 v{O+i}, v{O+i}, v{R+i}")
        a("s_waitcnt vmcnt(4)")
        for i in range(16): a(f"v_mul_f32 v{R+16+i}, v{F+2}, v{R+16+i}")
        a("s_waitcnt vmcnt(0)")
        for i in range(16): a(f"v_mul_f32 v{R+32+i}, v{F+3}, v{R+32+i}")
        for i in range(16): a(f"v_add_f32 v{R+16+i}, v{R+16+i}, v{R+32+i}")
        for i in range(16): a(f"v_add_f32 v{O+i}, v{O+i}, v{R+16+i}")
        for r in range(4):
            a(f"v_cvt_pk_bf16_f32 v{R+2*r}, v{O+r}, v{O+4+r}")
            a(f"v_cvt_pk_bf16_f32 v{R+2*r+1}, v{O+8+r}, v{O+12+r}")
        for r in range(4):
            a(f"buffer_store_dwordx2 v[{R+2*r}:{R+2*r+1}], v{A2}, {self.srd(self.sOut)}, s{self.sA} offen offset:{r*16}")
        a("L_done:")
        if self.stamp:
            a("s_waitcnt vmcnt(0)")
            self.stampw(7)
            a(f"""s_lshl_b32 s{self.sA}, s2, 2
            s_add_u32 s{self.sA}, s{self.sA}, s{self.sW}
            s_lshl_b32 s{self.sA}, s{self.sA}, 6
            s_add_u32 s{self.sA}, s{self.sA}, {8<<20}
            v_lshlrev_b32 v{T0}, 2, v{ln}
            s_mov_b64 exec, 0xffff
            buffer_store_dword v3, v{T0}, {Ws}, s{self.sA} offen
            s_waitcnt vmcnt(0)""")

    def factors(self, St, n, F, sym=False):
        a = self.a
        M, Lr, T0 = self.vM, self.vL, self.vT0
        a(f"v_max3_f32 v{M}, v{St}, v{St+2}, v{St+4}\nv_max_f32 v{M}, v{M}, v{St+6}")
        for w in range(n): a(f"v_sub_f32 v{F+w}, v{St+2*w}, v{M}")
        for w in range(n): a(f"v_mul_f32 v{F+w}, s{self.sC}, v{F+w}")
        for w in range(n): a(f"v_exp_f32 v{F+w}, v{F+w}")
        a("s_nop 0")
        for w in range(n): a(f"v_mul_f32 v{St+2*w+1}, v{F+w}, v{St+2*w+1}")
        a(f"v_add_f32 v{St+1}, v{St+1}, v{St+3}\nv_add_f32 v{St+5}, v{St+5}, v{St+7}\nv_add_f32 v{Lr}, v{St+1}, v{St+5}")

if __name__ == "__main__":
    import ast
    out = sys.argv[1]
    kw = {}
    for s in sys.argv[2:]:
        k, v = s.split("=", 1)
        try: v = ast.literal_eval(v)
        except Exception: pass
        kw[k] = v
    open(out, "w").write(Gen(**kw).build())
```

```python
import sys, math
NAME = "standalone__gqa_softmax__sampling_kernel"

HEADER = """; GQA decode attention: B=8 Hq=16 Hkv=8 Sq=8 Sk=8192 D=256, bf16 in / bf16 out.
"""

class Gen:
    def __init__(self, R=5, flags="nt", rot=3, stamp=0, mapping="lo", proto="A", Rk=None, Rv=None, hlast=False, dbgskip=""):
        self.R = R; self.flags = flags; self.rot = rot; self.stamp = stamp; self.mapping = mapping; self.proto = proto
        self.Rk = Rk or R; self.Rv = Rv or R
        self.hlast = hlast
        self.dbgskip = dbgskip
        self.L = []; self.q = []; self.pos = 0
        self.NT = 16
        self.vKg, self.vVg = 1, 2
        self.vKr = 4
        self.vM, self.vL = 8, 9
        self.vAl = 10
        self.vT0, self.vT1, self.vT2 = 12, 13, 14
        self.vMc = 15
        self.vS = 16; self.vP = 24; self.vLane = 28
        self.vA0, self.vA1, self.vA2 = 29, 30, 31
        self.vT = 32; self.vO = 48; self.vVb = 112
        self.vKb = 176
        self.aQ = 0
        self.sK, self.sV, self.sQ, self.sOut, self.sWs, self.sDbg = 16, 20, 24, 28, 32, 36
        self.sW, self.sBH, self.sSp = 40, 41, 42
        self.sTile, self.sCnt = 43, 45
        self.sC, self.sLo, self.sHi = 46, 47, 48
        self.sA, self.sB, self.sD = 49, 50, 51
        self.sO1, self.sO2, self.sO3 = 52, 53, 54
        self.sS1, self.sS2, self.sS3 = 55, 56, 57
        self.sRot, self.sLds = 58, 59
        self.sT = 60
        self.sOff = 64
        self.sSl = 68
        self.KPAD = 32
        self.KREG = 16 * (1024 + self.KPAD)
    def a(self, s):
        for x in s.split("\n"):
            x = x.strip()
            if x: self.L.append(x)
    def srd(self, s): return f"s[{s}:{s+3}]"
    def vm(self, tag, text):
        self.a(text); self.q.append(tag)
    def need(self, pred):
        idx = max((i for i, t in enumerate(self.q) if pred(t)), default=-1)
        if idx < 0: return
        n = len(self.q) - 1 - idx
        assert n <= 63, n
        self.a(f"s_waitcnt vmcnt({n})")
        self.q = self.q[idx+1:]
    def window(self, R):
        p = self.pos - R
        self.need(lambda t: t[0] in "KV" and t[3] <= p)
    def offsets(self):
        a = self.a
        for i in range(4):
            if i: a(f"s_add_u32 s{self.sOff+i}, s{self.sTile}, {i*4096}\ns_xor_b32 s{self.sOff+i}, s{self.sOff+i}, s{self.sRot}")
            else: a(f"s_xor_b32 s{self.sOff}, s{self.sTile}, s{self.sRot}")
        a(f"s_add_u32 s{self.sTile}, s{self.sTile}, 16384")
    def loadK(self, n, i):
        self.a(f"s_add_u32 m0, s{self.sLds}, {(i>>2)*4096 + i*self.KPAD}")
        self.window(self.Rk)
        if self.L[-1].startswith("s_add_u32 m0"): self.a("s_nop 0")
        self.vm(("K", n, i, self.pos), f"buffer_load_dwordx4 v{self.vKg}, {self.srd(self.sK)}, s{self.sOff + (i>>2)} offen offset:{(i&3)*1024} {self.flags} lds")
        self.pos += 1
    def vorder(self, n):
        if self.hlast and n == self.NT - 1:
            return [(t, r, h) for h in range(2) for t in range(2) for r in range(4)]
        return [(t, r, h) for t in range(2) for r in range(4) for h in range(2)]
    def vreg(self, t, r, h): return self.vVb + h*32 + (t*4 + r)*4
    def loadV(self, n, i):
        t, r, h = self.vorder(n)[i]
        g = self.vreg(t, r, h)
        self.window(self.Rv)
        self.vm(("V", n, h, self.pos), f"buffer_load_dwordx4 v[{g}:{g+3}], v{self.vVg}, {self.srd(self.sV)}, s{self.sOff + 2*t + (r>>1)} offen offset:{(r&1)*2048 + h*256} {self.flags}")
        self.pos += 1
    def qk_chunks(self, n):
        a = self.a; S = self.vS; Kb = self.vKb
        T0, T1, T2, M, Lr, Al, Mc, O = self.vT0, self.vT1, self.vT2, self.vM, self.vL, self.vAl, self.vMc, self.vO
        def rd(t):
            def f():
                self.need(lambda x: (x[0] == "K" and x[1] == n) or x[0] == "Q")
                for j in range(8):
                    r = Kb + t*32 + j*4
                    a(f"ds_read_b128 v[{r}:{r+3}], v{self.vKr + (j&3)} offset:{(j>>2)*256 + t*8*(1024+self.KPAD)}")
            return f
        def mm(t):
            def f():
                a(f"s_waitcnt lgkmcnt({8 if t == 0 else 0})")
                for j in range(8):
                    k = Kb + t*32 + j*4; c = "0" if j == 0 else f"v[{S+4*t}:{S+4*t+3}]"
                    a(f"v_mfma_f32_16x16x32_bf16 v[{S+4*t}:{S+4*t+3}], v[{k}:{k+3}], a[{self.aQ+4*j}:{self.aQ+4*j+3}], {c}")
            return f
        def mx():
            a(f"""s_nop 7
            v_max3_f32 v{T0}, v{S}, v{S+1}, v{S+2}
            v_max3_f32 v{T1}, v{S+3}, v{S+4}, v{S+5}
            v_max3_f32 v{T0}, v{T0}, v{S+6}, v{S+7}
            v_max3_f32 v{T0}, v{T0}, v{T1}, v{M}
            v_mov_b32 v{T1}, v{T0}
            s_nop 1
            v_permlane16_swap_b32 v{T0}, v{T1}
            v_max_f32 v{T0}, v{T0}, v{T1}
            v_mov_b32 v{T1}, v{T0}
            s_nop 1
            v_permlane32_swap_b32 v{T0}, v{T1}
            v_max_f32 v{T0}, v{T0}, v{T1}
            v_sub_f32 v{T2}, v{M}, v{T0}
            v_mul_f32 v{Mc}, s{self.sC}, v{T0}
            v_mul_f32 v{T2}, s{self.sC}, v{T2}
            v_mov_b32 v{M}, v{T0}
            v_exp_f32 v{Al}, v{T2}""")
        def ex():
            for i in range(8): a(f"v_fma_f32 v{S+i}, v{S+i}, s{self.sC}, -v{Mc}")
            for i in range(8): a(f"v_exp_f32 v{S+i}, v{S+i}")
        def pk():
            for j in range(4): a(f"v_cvt_pk_bf16_f32 v{self.vP+j}, v{S+2*j}, v{S+2*j+1}")
            a(f"""v_add_f32 v{T0}, v{S}, v{S+1}
            v_add_f32 v{T1}, v{S+2}, v{S+3}
            v_add_f32 v{T2}, v{S+4}, v{S+5}
            v_add_f32 v{S+6}, v{S+6}, v{S+7}
            v_add_f32 v{T0}, v{T0}, v{T1}
            v_add_f32 v{T2}, v{T2}, v{S+6}
            v_add_f32 v{T0}, v{T0}, v{T2}
            v_fma_f32 v{Lr}, v{Lr}, v{Al}, v{T0}""")
        def rs(lo, hi):
            def f():
                for i in range(lo, hi, 2): a(f"v_pk_mul_f32 v[{O+i}:{O+i+1}], v[{O+i}:{O+i+1}], v[{Al}:{Al+1}] op_sel_hi:[1,0]")
            return f
        return [rd(0), rd(1), mm(0), mm(1), mx, ex, rs(0, 32), pk, rs(32, 64)]
    def perms(self, p):
        h, x = p >> 2, p & 3
        T = self.vT + (p & 1) * 8
        for j in range(4):
            t, r = j >> 1, 2 * (j & 1)
            lo, hi = self.vreg(t, r, h) + x, self.vreg(t, r + 1, h) + x
            self.a(f"v_perm_b32 v{T+j}, v{hi}, v{lo}, s{self.sLo}")
            self.a(f"v_perm_b32 v{T+4+j}, v{hi}, v{lo}, s{self.sHi}")
    def pv(self, p):
        h, x = p >> 2, p & 3
        T = self.vT + (p & 1) * 8
        for o in range(2):
            d = self.vO + (h * 8 + 2 * x + o) * 4
            self.a(f"v_mfma_f32_16x16x32_bf16 v[{d}:{d+3}], v[{T+4*o}:{T+4*o+3}], v[{self.vP}:{self.vP+3}], v[{d}:{d+3}]")
    def pv_chunks(self, n):
        def mk(p):
            def f():
                if p == 0:
                    self.need(lambda x: x[0] == "V" and x[1] == n and x[2] == 0); self.perms(0)
                if p + 1 < 8:
                    if p + 1 == 4: self.need(lambda x: x[0] == "V" and x[1] == n)
                    self.perms(p + 1)
                self.pv(p)
            return f
        return [mk(p) for p in range(8)]
    def spread(self, chunks, first, nslots=16):
        out = [[] for _ in range(nslots)]
        room = nslots - first
        for i, c in enumerate(chunks):
            out[first + (i if len(chunks) <= room else i * room // len(chunks))].append(c)
        return out
    def vphase(self, n):
        ch = self.spread(self.qk_chunks(n), self.Rv - 1)
        for i in range(16):
            self.loadV(n, i)
            for c in ch[i]: c()
    def kphase(self, n, extra=None):
        ch = self.spread(self.pv_chunks(n - 1), self.Rk - 1) if n > 0 else [[] for _ in range(16)]
        self.offsets()
        for i in range(16):
            self.loadK(n, i)
            if extra and i in extra: extra[i]()
            for c in ch[i]: c()
    def tstamp(self):
        if not self.stamp: return
        a = self.a
        a(f"s_memrealtime s[{self.sT}:{self.sT+1}]\ns_waitcnt lgkmcnt(0)\ns_mov_b32 m0, s{self.sSl}\ns_add_u32 s{self.sSl}, s{self.sSl}, 1\nv_writelane_b32 v3, s{self.sT}, m0")
    def stampw(self, slot):
        if not self.stamp: return
        self.a(f"s_memrealtime s[{self.sT}:{self.sT+1}]\ns_waitcnt lgkmcnt(0)\nv_writelane_b32 v3, s{self.sT}, {slot}")

    def build(self):
        a = self.a
        W = 4
        self.STAT = W * self.KREG
        self.TICK = self.STAT + W * 512
        lds = self.TICK + 64
        self.L.append(HEADER + f"; @launch grid=(256,1,1) block=(256,1,1) lds={lds}")
        a('.amdgcn_target "amdgcn-amd-amdhsa--gfx950"\n.text')
        a(f".globl {NAME}\n.p2align 8\n.type {NAME},@function\n{NAME}:")
        a("s_cmp_ge_u32 s2, 256\ns_cbranch_scc1 L_end")
        a("s_load_dwordx8 s[4:11], s[0:1], 0\ns_load_dwordx4 s[12:15], s[0:1], 32")
        if self.stamp: a(f"s_memrealtime s[{self.sT+2}:{self.sT+3}]")
        ln = self.vLane; T0, T1, T2 = self.vT0, self.vT1, self.vT2
        a(f"v_lshrrev_b32 v1, 6, v0\nv_and_b32 v{ln}, 63, v0")
        a(f"v_readfirstlane_b32 s{self.sW}, v1")
        if self.mapping == "lo": a(f"s_lshr_b32 s{self.sBH}, s2, 2\ns_and_b32 s{self.sSp}, s2, 3")
        else: a(f"s_and_b32 s{self.sBH}, s2, 63\ns_lshr_b32 s{self.sSp}, s2, 6")
        a(f"""v_lshrrev_b32 v{T0}, 5, v{ln}
        v_xor_b32 v{self.vKg}, v{T0}, v{ln}
        v_lshlrev_b32 v{self.vKg}, 4, v{self.vKg}""")
        a(f"""s_lshl_b32 s{self.sA}, s{self.sBH}, 22
        s_lshl_b32 s{self.sB}, s{self.sSp}, 20
        s_add_u32 s{self.sA}, s{self.sA}, s{self.sB}
        s_lshl_b32 s{self.sB}, s{self.sW}, 18
        s_add_u32 s{self.sA}, s{self.sA}, s{self.sB}
        s_mul_i32 s{self.sLds}, s{self.sW}, {self.KREG}
        s_mov_b32 s{self.sTile}, 0""")
        R = self.sRot
        if self.rot == 0: a(f"s_mov_b32 s{R}, 0")
        elif self.rot == 2: a(f"s_lshl_b32 s{R}, s2, 2\ns_add_u32 s{R}, s{R}, s{self.sW}\ns_and_b32 s{R}, s{R}, 63\ns_lshl_b32 s{R}, s{R}, 12")
        elif self.rot == 3: a(f"s_lshr_b32 s{R}, s2, 3\ns_lshl_b32 s{R}, s{R}, 2\ns_add_u32 s{R}, s{R}, s{self.sW}\ns_and_b32 s{R}, s{R}, 63\ns_lshl_b32 s{R}, s{R}, 12")
        a(f"s_lshl_b32 s{self.sB}, s{self.sBH}, 13")
        a("s_waitcnt lgkmcnt(0)")
        K, V, Q = self.sK, self.sV, self.sQ
        a(f"s_add_u32 s{K}, s6, s{self.sA}\ns_addc_u32 s{K+1}, s7, 0\ns_mov_b32 s{K+2}, {1<<18}\ns_mov_b32 s{K+3}, 0x20000")
        def setup():
            a(f"s_add_u32 s{Q}, s4, s{self.sB}\ns_addc_u32 s{Q+1}, s5, 0\ns_mov_b32 s{Q+2}, 8192\ns_mov_b32 s{Q+3}, 0x20000")
            a(f"""v_and_b32 v{T0}, 15, v{ln}
            v_lshrrev_b32 v{T1}, 4, v{ln}
            v_lshlrev_b32 v{self.vA0}, 9, v{T0}
            v_lshl_add_u32 v{self.vA0}, v{T1}, 4, v{self.vA0}""")
            for j in range(8):
                self.vm(("Q", 0, 0, 0), f"buffer_load_dwordx4 a[{self.aQ+4*j}:{self.aQ+4*j+3}], v{self.vA0}, {self.srd(Q)}, 0 offen offset:{j*64}")
            a(f"s_add_u32 s{V}, s8, s{self.sA}\ns_addc_u32 s{V+1}, s9, 0\ns_mov_b32 s{V+2}, {1<<18}\ns_mov_b32 s{V+3}, 0x20000")
            a(f"""v_lshlrev_b32 v{T2}, 2, v{T1}
            s_movk_i32 s{self.sD}, 0x3102
            v_lshrrev_b32 v{T2}, v{T2}, s{self.sD}
            v_and_b32 v{T2}, 3, v{T2}
            v_lshlrev_b32 v{self.vVg}, 9, v{T2}
            v_lshl_add_u32 v{self.vVg}, v{T0}, 4, v{self.vVg}""")
            a(f"""v_bfe_u32 v{T2}, v{ln}, 2, 2
            v_lshlrev_b32 v{T2}, 2, v{T2}
            v_lshrrev_b32 v{T2}, v{T2}, s{self.sD}
            v_and_b32 v{T2}, 3, v{T2}
            v_and_b32 v{T0}, 3, v{ln}
            v_lshl_add_u32 v{T0}, v{T0}, 2, v{T2}
            v_lshrrev_b32 v{T2}, 1, v{T0}
            v_mul_u32_u24 v{T2}, {1024+self.KPAD}, v{T2}
            v_and_b32 v{T0}, 1, v{T0}
            v_lshl_add_u32 v{T2}, v{T0}, 9, v{T2}
            v_xor_b32 v{T1}, v{T1}, v{T0}
            v_lshl_add_u32 v{T2}, v{T1}, 4, v{T2}
            v_add_u32 v{self.vKr}, s{self.sLds}, v{T2}""")
            for j in range(1, 4): a(f"v_add_u32 v{self.vKr+j}, {64*j}, v{self.vKr}")
            Ou, Ws, Db = self.sOut, self.sWs, self.sDbg
            a(f"s_add_u32 s{Ou}, s10, s{self.sB}\ns_addc_u32 s{Ou+1}, s11, 0\ns_mov_b32 s{Ou+2}, 8192\ns_mov_b32 s{Ou+3}, 0x20000")
            a(f"s_mov_b32 s{Ws}, s14\ns_mov_b32 s{Ws+1}, s15\ns_mov_b32 s{Ws+2}, {16<<20}\ns_mov_b32 s{Ws+3}, 0x20000")
            a(f"s_mov_b32 s{Db}, s12\ns_mov_b32 s{Db+1}, s13\ns_mov_b32 s{Db+2}, 256\ns_mov_b32 s{Db+3}, 0x20000")
            a(f"s_mov_b32 s{self.sC}, 0x3db8aa3b")
            a(f"s_mov_b32 s{self.sLo}, 0x05040100\ns_mov_b32 s{self.sHi}, 0x07060302")
            for i in range(64): a(f"v_mov_b32 v{self.vO+i}, 0")
            a(f"v_mov_b32 v{self.vM}, 0xff800000\nv_mov_b32 v{self.vL}, 0\nv_mov_b32 v{self.vAl+1}, 0")
            if self.stamp:
                a(f"v_mov_b32 v3, 0\ns_nop 1\nv_writelane_b32 v3, s{self.sT+2}, 0\ns_mov_b32 s{self.sSl}, 8")
                self.stampw(1)
        self.kphase(0, extra={self.Rk - 1: setup})
        NT = self.NT
        self.vphase(0); self.kphase(1); self.tstamp()
        base = self.pos
        q0 = [(t[0], t[1], t[2], t[3] - base) for t in self.q]
        a(f"s_mov_b32 s{self.sCnt}, {NT-2}")
        a(".p2align 6\nL_loop:")
        self.vphase(1); self.kphase(2); self.tstamp()
        q1 = [(t[0], t[1] - 1, t[2], t[3] - self.pos) for t in self.q]
        assert q0 == q1, (q0, q1)
        a(f"s_sub_u32 s{self.sCnt}, s{self.sCnt}, 1\ns_cmp_lg_u32 s{self.sCnt}, 0\ns_cbranch_scc1 L_loop")
        self.q = [(t[0], NT - 1, t[2], t[3]) for t in self.q]
        self.stampw(3)
        self.vphase(NT - 1)
        self.stampw(2)
        for c in self.pv_chunks(NT - 1): c()
        a("s_nop 1")
        self.tstamp()
        self.stampw(4)
        assert not self.q
        self.epilogue()
        a("L_end:\ns_endpgm")
        a(f""".section .rodata,"a"
.p2align 6
.amdhsa_kernel {NAME}
.amdhsa_next_free_vgpr 288
.amdhsa_next_free_sgpr 72
.amdhsa_accum_offset 256
.amdhsa_group_segment_fixed_size 0
.amdhsa_kernarg_size 48
.amdhsa_user_sgpr_count 2
.amdhsa_user_sgpr_kernarg_segment_ptr 1
.amdhsa_system_sgpr_workgroup_id_x 1
.amdhsa_float_denorm_mode_32 3
.end_amdhsa_kernel""")
        return "\n".join(self.L) + "\n"

    def epilogue(self):
        a = self.a
        T0, T1, T2, M, Lr, ln = self.vT0, self.vT1, self.vT2, self.vM, self.vL, self.vLane
        O = self.vO; R = self.vVb
        STAT, TICK, KREG = self.STAT, self.TICK, self.KREG
        A0, A1, A2 = self.vA0, self.vA1, self.vA2
        a(f"""v_mov_b32 v{T1}, v{Lr}
        s_nop 1
        v_permlane16_swap_b32 v{Lr}, v{T1}
        v_add_f32 v{Lr}, v{Lr}, v{T1}
        v_mov_b32 v{T1}, v{Lr}
        s_nop 1
        v_permlane32_swap_b32 v{Lr}, v{T1}
        v_add_f32 v{Lr}, v{Lr}, v{T1}
        v_lshl_add_u32 v{A0}, v{ln}, 4, s{self.sLds}
        s_lshl_b32 s{self.sA}, s{self.sW}, 9
        s_add_u32 s{self.sA}, s{self.sA}, {STAT}
        v_lshl_add_u32 v{A1}, v{ln}, 3, s{self.sA}
        ds_write_b64 v{A1}, v[{M}:{M+1}]""")
        for u in range(16): a(f"ds_write_b128 v{A0}, v[{O+4*u}:{O+4*u+3}] offset:{u*1024}")
        a(f"""s_lshl_b32 s{self.sA}, s{self.sW}, 12
        v_lshl_add_u32 v{A0}, v{ln}, 4, s{self.sA}
        s_mov_b32 s{self.sA}, {STAT}
        v_lshl_add_u32 v{A1}, v{ln}, 3, s{self.sA}
        s_waitcnt lgkmcnt(0)
        s_barrier""")
        St = self.vS
        for w in range(4): a(f"ds_read_b64 v[{St+2*w}:{St+2*w+1}], v{A1} offset:{w*512}")
        for w in range(4):
            if w == 2: a("s_waitcnt lgkmcnt(8)"); self.factors(St, 4, self.vT)
            for u in range(4):
                r = R + w*16 + u*4
                a(f"ds_read_b128 v[{r}:{r+3}], v{A0} offset:{w*KREG + u*1024}")
        F = self.vT
        a(f"""s_lshl_b32 s{self.sA}, s{self.sBH}, 4
        s_add_u32 s{self.sA}, s{self.sA}, s{self.sW}""")
        for i, (so, ss) in enumerate([(self.sB, self.sD), (self.sO1, self.sS1), (self.sO2, self.sS2), (self.sO3, self.sS3)]):
            a(f"""s_xor_b32 s{ss}, s{self.sSp}, {i}
            s_lshl_b32 s{ss}, s{ss}, 2
            s_add_u32 s{ss}, s{ss}, s{self.sA}
            s_lshl_b32 s{so}, s{ss}, 12
            s_lshl_b32 s{ss}, s{ss}, 9
            s_add_u32 s{ss}, s{ss}, {4<<20}""")
        a(f"v_lshlrev_b32 v{A0}, 4, v{ln}\nv_lshlrev_b32 v{A1}, 3, v{ln}")
        a("s_waitcnt lgkmcnt(12)")
        for i in range(16): a(f"v_mul_f32 v{O+i}, v{F}, v{R+i}")
        for w in range(1, 4):
            a(f"s_waitcnt lgkmcnt({12-4*w})")
            for i in range(16): a(f"v_fmac_f32 v{O+i}, v{F+w}, v{R+16*w+i}")
        self.stampw(5)
        Ws = self.srd(self.sWs)
        for u in range(4): a(f"buffer_store_dwordx4 v[{O+4*u}:{O+4*u+3}], v{A0}, {Ws}, s{self.sB} offen offset:{u*1024} sc1")
        a(f"buffer_store_dwordx2 v[{M}:{M+1}], v{A1}, {Ws}, s{self.sD} offen sc1")
        a(f"""s_waitcnt vmcnt(0)
        s_barrier
        s_cmp_lg_u32 s{self.sW}, 0
        s_cbranch_scc1 L_notw0
        s_lshl_b32 s{self.sA}, s{self.sBH}, 2
        v_mov_b32 v{T0}, s{self.sA}
        v_mov_b32 v{T1}, 1
        v_mov_b32 v{T2}, {TICK}
        s_mov_b64 exec, 1
        buffer_atomic_add v{T1}, v{T0}, {self.srd(self.sDbg)}, 0 offen sc0
        s_waitcnt vmcnt(0)
        ds_write_b32 v{T2}, v{T1}
        s_mov_b64 exec, -1
        s_waitcnt lgkmcnt(0)
        L_notw0:
        s_barrier
        v_mov_b32 v{T2}, {TICK}
        ds_read_b32 v{T1}, v{T2}
        s_waitcnt lgkmcnt(0)
        v_readfirstlane_b32 s{self.sA}, v{T1}""")
        self.stampw(6)
        a(f"""s_cmp_lg_u32 s{self.sA}, 3
        s_cbranch_scc1 L_done""")
        a(f"v_mov_b32 v{St}, v{M}\nv_mov_b32 v{St+1}, v{Lr}")
        for i, ss in enumerate([self.sS1, self.sS2, self.sS3]):
            a(f"buffer_load_dwordx2 v[{St+2+2*i}:{St+3+2*i}], v{A1}, {Ws}, s{ss} offen sc1")
        for i, so in enumerate([self.sO1, self.sO2, self.sO3]):
            for u in range(4):
                r = R + i*16 + u*4
                a(f"buffer_load_dwordx4 v[{r}:{r+3}], v{A0}, {Ws}, s{so} offen offset:{u*1024} sc1")
        a(f"""v_and_b32 v{T0}, 15, v{ln}
        v_lshrrev_b32 v{T1}, 4, v{ln}
        v_lshlrev_b32 v{A2}, 9, v{T0}
        v_lshl_add_u32 v{A2}, v{T1}, 6, v{A2}
        s_lshr_b32 s{self.sA}, s{self.sW}, 1
        s_lshl_b32 s{self.sA}, s{self.sA}, 8
        s_and_b32 s{self.sB}, s{self.sW}, 1
        s_lshl_b32 s{self.sB}, s{self.sB}, 3
        s_add_u32 s{self.sA}, s{self.sA}, s{self.sB}
        s_waitcnt vmcnt(12)""")
        self.factors(St, 4, F)
        a(f"v_rcp_f32 v{T0}, v{Lr}\ns_nop 0")
        for w in range(4): a(f"v_mul_f32 v{F+w}, v{F+w}, v{T0}")
        for i in range(16): a(f"v_mul_f32 v{O+i}, v{F}, v{O+i}")
        a("s_waitcnt vmcnt(8)")
        for i in range(16): a(f"v_mul_f32 v{R+i}, v{F+1}, v{R+i}")
        for i in range(16): a(f"v_add_f32 v{O+i}, v{O+i}, v{R+i}")
        a("s_waitcnt vmcnt(4)")
        for i in range(16): a(f"v_mul_f32 v{R+16+i}, v{F+2}, v{R+16+i}")
        a("s_waitcnt vmcnt(0)")
        for i in range(16): a(f"v_mul_f32 v{R+32+i}, v{F+3}, v{R+32+i}")
        for i in range(16): a(f"v_add_f32 v{R+16+i}, v{R+16+i}, v{R+32+i}")
        for i in range(16): a(f"v_add_f32 v{O+i}, v{O+i}, v{R+16+i}")
        for r in range(4):
            a(f"v_cvt_pk_bf16_f32 v{R+2*r}, v{O+r}, v{O+4+r}")
            a(f"v_cvt_pk_bf16_f32 v{R+2*r+1}, v{O+8+r}, v{O+12+r}")
        for r in range(4):
            a(f"buffer_store_dwordx2 v[{R+2*r}:{R+2*r+1}], v{A2}, {self.srd(self.sOut)}, s{self.sA} offen offset:{r*16}")
        a("L_done:")
        if self.stamp:
            a("s_waitcnt vmcnt(0)")
            self.stampw(7)
            a(f"""s_lshl_b32 s{self.sA}, s2, 2
            s_add_u32 s{self.sA}, s{self.sA}, s{self.sW}
            s_lshl_b32 s{self.sA}, s{self.sA}, 8
            s_add_u32 s{self.sA}, s{self.sA}, {8<<20}
            s_getreg_b32 s{self.sB}, hwreg(HW_REG_XCC_ID)
            s_getreg_b32 s{self.sD}, hwreg(HW_REG_HW_ID)
            v_writelane_b32 v3, s{self.sB}, 62
            v_writelane_b32 v3, s{self.sD}, 63
            v_lshlrev_b32 v{T0}, 2, v{ln}
            buffer_store_dword v3, v{T0}, {Ws}, s{self.sA} offen
            s_waitcnt vmcnt(0)""")

    def factors(self, St, n, F):
        a = self.a
        M, Lr = self.vM, self.vL
        a(f"v_max3_f32 v{M}, v{St}, v{St+2}, v{St+4}\nv_max_f32 v{M}, v{M}, v{St+6}")
        for w in range(n): a(f"v_sub_f32 v{F+w}, v{St+2*w}, v{M}")
        for w in range(n): a(f"v_mul_f32 v{F+w}, s{self.sC}, v{F+w}")
        for w in range(n): a(f"v_exp_f32 v{F+w}, v{F+w}")
        a("s_nop 0")
        for w in range(n): a(f"v_mul_f32 v{St+2*w+1}, v{F+w}, v{St+2*w+1}")
        a(f"v_add_f32 v{St+1}, v{St+1}, v{St+3}\nv_add_f32 v{St+5}, v{St+5}, v{St+7}\nv_add_f32 v{Lr}, v{St+1}, v{St+5}")

if __name__ == "__main__":
    import ast
    out = sys.argv[1]
    kw = {}
    for s in sys.argv[2:]:
        k, v = s.split("=", 1)
        try: v = ast.literal_eval(v)
        except Exception: pass
        kw[k] = v
    open(out, "w").write(Gen(**kw).build())
```

```python
import sys, math
NAME = "standalone__gqa_softmax__sampling_kernel"

HEADER = """; GQA decode attention: B=8 Hq=16 Hkv=8 Sq=8 Sk=8192 D=256, bf16 in / bf16 out.
"""
SENT = 0x7fffffff

class Gen:
    def __init__(self, R=5, flags="nt", rot=3, stamp=0, mapping="lo", Rk=None, Rv=None, hlast=False,
                 Rl=None, RlK=None, early=False, outflags="", barslot=None, tickslot=0, stflags="sc1", fill="start", nofill=False, fillflags=None, filln=5, proto="A", lock=0, ck=(8, 16), cv=(16, 16), fastat=3, slowat=0, pk=True, ctr="dbg", cstride=256, tail=None):
        self.R = R; self.flags = flags; self.rot = rot; self.stamp = stamp; self.mapping = mapping
        self.Rk = Rk or R; self.Rv = Rv or R
        self.Rl = Rl; self.RlK = RlK
        self.hlast = hlast; self.early = early; self.outflags = outflags; self.stflags = stflags
        self.barslot = barslot if barslot is not None else min(15, 2 * self.Rk + 1)
        self.proto = proto; self.lock = lock; self.ck = ck; self.cv = cv; self.fastat = fastat; self.slowat = slowat; self.pk = pk; self.tail = tail or []
        if Rl or RlK: self.tail = [(RlK or Rk or R, Rl or Rv or R)]
        self.ctr = ctr; self.cstride = cstride
        if proto in 'AB': nofill = True; fill = 'start'
        self.tickslot = tickslot; self.fill = fill; self.nofill = nofill; self.fillflags = stflags if fillflags is None else fillflags; self.filln = filln
        self.L = []; self.q = []; self.pos = 0
        self.NT = 16
        self.vKg, self.vVg = 1, 2
        self.vKr = 4
        self.vM, self.vL = 8, 9
        self.vAl = 10
        self.vT0, self.vT1, self.vT2 = 12, 13, 14
        self.vMc = 15
        self.vS = 16; self.vP = 24; self.vLane = 28
        self.vA0, self.vA1 = 29, 30
        self.vT = 32; self.vO = 48; self.vVb = 112
        self.vKb = 176
        self.vTk, self.vTa = 240, 241
        self.vSt2 = 242
        self.vRo, self.vRr, self.vW16, self.vW8, self.vOut = 250, 251, 252, 253, 254
        self.aQ = 0
        self.sK, self.sV, self.sQ, self.sOut, self.sWs, self.sDbg = 16, 20, 24, 28, 32, 36
        self.sW, self.sBH, self.sSp = 40, 41, 42
        self.sTile, self.sRole, self.sCnt = 43, 44, 45
        self.sC, self.sLo, self.sHi = 46, 47, 48
        self.sA, self.sB, self.sD = 49, 50, 51
        self.sPO = 52
        self.sPS = 72
        self.sRot, self.sLds = 58, 59
        self.sT = 60
        self.sOff = 64
        self.sSl = 68
        self.sPolled, self.sSpin, self.sSent, self.sOutOff = 69, 70, 71, 56
        self.sMode, self.sSh, self.sInc = 57, 76, 77
        self.sFl, self.sFlP = 78, 79
        self.vFl = 32
        self.vFp = 236
        self.nlab = 0
        self.KPAD = 32
        self.ROW2 = 1024 + self.KPAD
        self.KREG = 16 * self.ROW2
        self.QB = 4 * self.KREG
        self.STAT = self.QB + 8 * self.ROW2
        self.ROLE = self.STAT + 4 * 512
        self.LDS = self.ROLE + 64
    def a(self, s):
        for x in s.split("\n"):
            x = x.strip()
            if x: self.L.append(x)
    def srd(self, s): return f"s[{s}:{s+3}]"
    def vm(self, tag, text):
        self.a(text); self.q.append(tag)
    def need(self, pred):
        idx = max((i for i, t in enumerate(self.q) if pred(t)), default=-1)
        if idx < 0: return
        n = len(self.q) - 1 - idx
        assert n <= 63, n
        self.a(f"s_waitcnt vmcnt({n})")
        self.q = self.q[idx+1:]
    def window(self, R, ctl=False):
        if not ctl:
            p = self.pos - R
            self.need(lambda t: t[0] in "KV" and t[3] <= p)
            return
        def cnt(r):
            idx = max((i for i, t in enumerate(self.q) if t[0] in "KV" and t[3] <= self.pos - r), default=-1)
            return None if idx < 0 else len(self.q) - 1 - idx
        n0, n1 = cnt(R), cnt(R - 1)
        self.need(lambda t: t[0] in "KV" and t[3] <= self.pos - R - 1)
        self.nlab += 1
        lab = f"L_w{self.nlab}"
        self.a(f"""s_cbranch_vccnz {lab}
        s_waitcnt vmcnt({n0})
        s_bitcmp1_b32 s{self.sMode}, 0
        s_cbranch_scc0 {lab}
        s_waitcnt vmcnt({n1})
        {lab}:""")
    def offsets(self):
        a = self.a
        for i in range(4):
            if i: a(f"s_add_u32 s{self.sOff+i}, s{self.sTile}, {i*4096}\ns_xor_b32 s{self.sOff+i}, s{self.sOff+i}, s{self.sRot}")
            else: a(f"s_xor_b32 s{self.sOff}, s{self.sTile}, s{self.sRot}")
        a(f"s_add_u32 s{self.sTile}, s{self.sTile}, 16384")
    def rK(self, n):
        i = n - (self.NT - len(self.tail))
        return self.tail[i][0] if i >= 0 else self.Rk
    def rV(self, n):
        i = n - (self.NT - len(self.tail))
        return self.tail[i][1] if i >= 0 else self.Rv
    def loadK(self, n, i):
        self.a(f"s_add_u32 m0, s{self.sLds}, {(i>>2)*4096 + i*self.KPAD}")
        self.window(self.rK(n), self.lock and n > 0 and self.ck[0] <= i < self.ck[1])
        if self.L[-1].startswith("s_add_u32 m0"): self.a("s_nop 0")
        self.vm(("K", n, i, self.pos), f"buffer_load_dwordx4 v{self.vKg}, {self.srd(self.sK)}, s{self.sOff + (i>>2)} offen offset:{(i&3)*1024} {self.flags} lds")
        self.pos += 1
    def vorder(self, n):
        if self.hlast and n == self.NT - 1:
            return [(t, r, h) for h in range(2) for t in range(2) for r in range(4)]
        return [(t, r, h) for t in range(2) for r in range(4) for h in range(2)]
    def vreg(self, t, r, h): return self.vVb + h*32 + (t*4 + r)*4
    def loadV(self, n, i):
        t, r, h = self.vorder(n)[i]
        g = self.vreg(t, r, h)
        self.window(self.rV(n), self.lock and n > 0 and self.cv[0] <= i < self.cv[1])
        self.vm(("V", n, h, self.pos), f"buffer_load_dwordx4 v[{g}:{g+3}], v{self.vVg}, {self.srd(self.sV)}, s{self.sOff + 2*t + (r>>1)} offen offset:{(r&1)*2048 + h*256} {self.flags}")
        self.pos += 1
    def qk_chunks(self, n):
        a = self.a; S = self.vS; Kb = self.vKb
        T0, T1, T2, M, Lr, Al, Mc, O = self.vT0, self.vT1, self.vT2, self.vM, self.vL, self.vAl, self.vMc, self.vO
        def rd(t):
            def f():
                self.need(lambda x: x[0] == "K" and x[1] == n)
                for j in range(8):
                    r = Kb + t*32 + j*4
                    a(f"ds_read_b128 v[{r}:{r+3}], v{self.vKr + (j&3)} offset:{(j>>2)*256 + t*8*self.ROW2}")
            return f
        def mm(t):
            def f():
                a(f"s_waitcnt lgkmcnt({8 if t == 0 else 0})")
                for j in range(8):
                    k = Kb + t*32 + j*4; c = "0" if j == 0 else f"v[{S+4*t}:{S+4*t+3}]"
                    a(f"v_mfma_f32_16x16x32_bf16 v[{S+4*t}:{S+4*t+3}], v[{k}:{k+3}], a[{self.aQ+4*j}:{self.aQ+4*j+3}], {c}")
            return f
        def mx():
            a(f"""s_nop 7
            v_max3_f32 v{T0}, v{S}, v{S+1}, v{S+2}
            v_max3_f32 v{T1}, v{S+3}, v{S+4}, v{S+5}
            v_max3_f32 v{T0}, v{T0}, v{S+6}, v{S+7}
            v_max3_f32 v{T0}, v{T0}, v{T1}, v{M}
            v_mov_b32 v{T1}, v{T0}
            s_nop 1
            v_permlane16_swap_b32 v{T0}, v{T1}
            v_max_f32 v{T0}, v{T0}, v{T1}
            v_mov_b32 v{T1}, v{T0}
            s_nop 1
            v_permlane32_swap_b32 v{T0}, v{T1}
            v_max_f32 v{T0}, v{T0}, v{T1}
            v_sub_f32 v{T2}, v{M}, v{T0}
            v_mul_f32 v{Mc}, s{self.sC}, v{T0}
            v_mul_f32 v{T2}, s{self.sC}, v{T2}
            v_mov_b32 v{M}, v{T0}
            v_exp_f32 v{Al}, v{T2}""")
        def ex():
            for i in range(8): a(f"v_fma_f32 v{S+i}, v{S+i}, s{self.sC}, -v{Mc}")
            for i in range(8): a(f"v_exp_f32 v{S+i}, v{S+i}")
        def pk():
            for j in range(4): a(f"v_cvt_pk_bf16_f32 v{self.vP+j}, v{S+2*j}, v{S+2*j+1}")
            a(f"""v_add_f32 v{T0}, v{S}, v{S+1}
            v_add_f32 v{T1}, v{S+2}, v{S+3}
            v_add_f32 v{T2}, v{S+4}, v{S+5}
            v_add_f32 v{S+6}, v{S+6}, v{S+7}
            v_add_f32 v{T0}, v{T0}, v{T1}
            v_add_f32 v{T2}, v{T2}, v{S+6}
            v_add_f32 v{T0}, v{T0}, v{T2}
            v_fma_f32 v{Lr}, v{Lr}, v{Al}, v{T0}""")
        def rs(lo, hi):
            def f():
                for i in range(lo, hi, 2): a(f"v_pk_mul_f32 v[{O+i}:{O+i+1}], v[{O+i}:{O+i+1}], v[{Al}:{Al+1}] op_sel_hi:[1,0]")
            return f
        return [rd(0), rd(1), mm(0), mm(1), mx, ex, rs(0, 32), pk, rs(32, 64)]
    def perms(self, p):
        h, x = p >> 2, p & 3
        T = self.vT + (p & 1) * 8
        for j in range(4):
            t, r = j >> 1, 2 * (j & 1)
            lo, hi = self.vreg(t, r, h) + x, self.vreg(t, r + 1, h) + x
            self.a(f"v_perm_b32 v{T+j}, v{hi}, v{lo}, s{self.sLo}")
            self.a(f"v_perm_b32 v{T+4+j}, v{hi}, v{lo}, s{self.sHi}")
    def pv(self, p):
        h, x = p >> 2, p & 3
        T = self.vT + (p & 1) * 8
        for o in range(2):
            d = self.vO + (h * 8 + 2 * x + o) * 4
            self.a(f"v_mfma_f32_16x16x32_bf16 v[{d}:{d+3}], v[{T+4*o}:{T+4*o+3}], v[{self.vP}:{self.vP+3}], v[{d}:{d+3}]")
    def pv_chunks(self, n):
        def mk(p):
            def f():
                if p == 0:
                    self.need(lambda x: x[0] == "V" and x[1] == n and x[2] == 0); self.perms(0)
                if p + 1 < 8:
                    if p + 1 == 4: self.need(lambda x: x[0] == "V" and x[1] == n)
                    self.perms(p + 1)
                self.pv(p)
            return f
        return [mk(p) for p in range(8)]
    def spread(self, chunks, first, last=15):
        out = [[] for _ in range(16)]
        room = last + 1 - first
        for i, c in enumerate(chunks):
            out[first + (i if len(chunks) <= room else i * room // len(chunks))].append(c)
        return out
    def vphase(self, n, extra=None, post=None):
        ch = self.spread(self.qk_chunks(n), min(self.rV(n), 8) - 1)
        for i in range(16):
            self.loadV(n, i)
            if extra and i in extra: extra[i]()
            for c in ch[i]: c()
            if post and i in post: post[i]()
    def kphase(self, n, extra=None):
        ch = self.spread(self.pv_chunks(n - 1), min(self.rK(n), 8) - 1) if n > 0 else [[] for _ in range(16)]
        self.offsets()
        if self.lock and n > 0:
            extra = dict(extra or {})
            a = self.a
            def inc():
                a(f"v_mov_b32 v{self.vTk}, s{self.sInc}\ns_mov_b64 exec, 1")
                self.vm(("A", 0, 0, 0), f"buffer_atomic_add v{self.vTk}, v{self.vTa}, {self.srd(self.sDbg)}, 0 offen sc0")
                a("s_mov_b64 exec, -1")
            def rank():
                self.need(lambda x: x[0] == "A")
                A, B, D = self.sA, self.sB, self.sD
                a(f"""v_readfirstlane_b32 s{A}, v{self.vTk}
                s_nop 0
                s_lshr_b32 s{B}, s{A}, s{self.sSh}
                s_and_b32 s{B}, s{B}, 0xff
                s_mul_i32 s{B}, s{B}, 0x01010101
                s_or_b32 s{B}, s{B}, 0x80808080
                s_sub_u32 s{B}, s{B}, s{A}
                s_andn2_b32 s{B}, 0x80808080, s{B}
                s_bcnt1_i32_b32 s{B}, s{B}
                s_cmp_lt_u32 s{B}, {self.slowat + 1}
                s_cselect_b32 s{D}, 1, 0
                s_cmp_ge_u32 s{B}, {self.fastat}
                s_cselect_b32 s{D}, 2, s{D}
                v_mov_b32 v{self.vTk}, s{D}
                s_mov_b64 exec, 1
                ds_write_b32 v{self.vRo}, v{self.vTk} offset:8
                s_mov_b64 exec, -1""")
            def mode_r():
                a(f"ds_read_b32 v{self.vA1}, v{self.vRr} offset:8")
            def mode_s():
                a(f"""s_waitcnt lgkmcnt(0)
                v_readfirstlane_b32 s{self.sMode}, v{self.vA1}
                s_nop 0
                s_bitcmp1_b32 s{self.sMode}, 1
                s_cselect_b64 vcc, -1, 0""")
            extra.setdefault(0, []).append(inc)
            extra.setdefault(self.rK(n) + 1, []).append(rank)
            c0 = self.ck[0] if self.ck[0] < 16 else 16
            extra.setdefault(c0 - 2, []).append(mode_r)
            extra.setdefault(c0 - 1, []).append(mode_s)
        for i in range(16):
            self.loadK(n, i)
            if extra and i in extra:
                for c in extra[i]: c()
            for c in ch[i]: c()
    def tstamp(self):
        if not self.stamp: return
        self.a(f"s_memrealtime s[{self.sT}:{self.sT+1}]\ns_waitcnt lgkmcnt(0)\ns_mov_b32 m0, s{self.sSl}\ns_add_u32 s{self.sSl}, s{self.sSl}, 1\nv_writelane_b32 v3, s{self.sT}, m0")
    def stampw(self, slot):
        if not self.stamp: return
        self.a(f"s_memrealtime s[{self.sT}:{self.sT+1}]\ns_waitcnt lgkmcnt(0)\nv_writelane_b32 v3, s{self.sT}, {slot}")
    def polls(self, track):
        Ws = self.srd(self.sWs)
        for i in range(1, 4):
            t = f"buffer_load_dwordx2 v[{self.vSt2+2*i}:{self.vSt2+2*i+1}], v{self.vW8}, {Ws}, s{self.sPS+i} offen sc1"
            self.vm(("P", 0, 0, 0), t) if track else self.a(t)
        for i in range(1, 4):
            for u in range(4):
                r = self.vKb + (i-1)*16 + u*4
                t = f"buffer_load_dwordx4 v[{r}:{r+3}], v{self.vW16}, {Ws}, s{self.sPO+i} offen offset:{u*1024} sc1"
                self.vm(("P", 0, 0, 0), t) if track else self.a(t)

    def flagstep(self, tag, loop=False):
        a = self.a; Fp = self.vFp; T = self.vTa
        a(f"""s_cmp_lg_u32 s{self.sPolled}, 2
        s_cbranch_scc1 L_fs{tag}
        L_fl{tag}:
        s_waitcnt vmcnt(0)
        v_add3_u32 v{T}, v{Fp}, v{Fp+1}, v{Fp+2}
        v_add_u32 v{T}, v{T}, v{Fp+3}
        s_nop 0
        v_readfirstlane_b32 s{self.sA}, v{T}
        s_nop 0
        s_cmp_eq_u32 s{self.sA}, 3
        s_cbranch_scc1 L_fg{tag}""")
        if loop:
            a(f"s_sub_u32 s{self.sSpin}, s{self.sSpin}, 1\ns_cmp_eq_u32 s{self.sSpin}, 0\ns_cbranch_scc1 L_fg{tag}")
        a(f"""s_mov_b64 exec, 1
        buffer_load_dwordx4 v[{Fp}:{Fp+3}], v{self.vW16}, {self.srd(self.sWs)}, s{self.sFlP} offen sc1
        s_mov_b64 exec, -1
        s_branch {"L_fl" if loop else "L_fs"}{tag}
        L_fg{tag}:""")
        self.polls(False)
        a(f"s_mov_b32 s{self.sPolled}, 1\nL_fs{tag}:")

    def build(self):
        a = self.a
        self.L.append(HEADER + f"; @launch grid=(256,1,1) block=(256,1,1) lds={self.LDS}")
        a('.amdgcn_target "amdgcn-amd-amdhsa--gfx950"\n.text')
        a(f".globl {NAME}\n.p2align 8\n.type {NAME},@function\n{NAME}:")
        a("s_cmp_ge_u32 s2, 256\ns_cbranch_scc1 L_end")
        a("s_load_dwordx8 s[4:11], s[0:1], 0\ns_load_dwordx4 s[12:15], s[0:1], 32")
        if self.stamp: a(f"s_memrealtime s[{self.sT+2}:{self.sT+3}]")
        ln = self.vLane; T0, T1, T2 = self.vT0, self.vT1, self.vT2
        W, BH, Sp = self.sW, self.sBH, self.sSp
        a(f"v_lshrrev_b32 v1, 6, v0\nv_and_b32 v{ln}, 63, v0")
        a(f"v_readfirstlane_b32 s{W}, v1")
        if self.mapping == "lo": a(f"s_lshr_b32 s{BH}, s2, 2\ns_and_b32 s{Sp}, s2, 3")
        elif self.mapping == "mix":
            a(f"""s_bfe_u32 s{Sp}, s2, 0x20003
            s_mul_i32 s{self.sA}, s{Sp}, 3
            s_sub_u32 s{self.sA}, s2, s{self.sA}
            s_and_b32 s{self.sA}, s{self.sA}, 7
            s_lshr_b32 s{BH}, s2, 5
            s_lshl_b32 s{BH}, s{BH}, 3
            s_add_u32 s{BH}, s{BH}, s{self.sA}""")
        else: a(f"s_and_b32 s{BH}, s2, 63\ns_lshr_b32 s{Sp}, s2, 6")
        a(f"""v_lshrrev_b32 v{T0}, 5, v{ln}
        v_xor_b32 v{self.vKg}, v{T0}, v{ln}
        v_lshlrev_b32 v{self.vKg}, 4, v{self.vKg}""")
        a(f"""s_lshl_b32 s{self.sA}, s{BH}, 22
        s_lshl_b32 s{self.sB}, s{Sp}, 20
        s_add_u32 s{self.sA}, s{self.sA}, s{self.sB}
        s_lshl_b32 s{self.sB}, s{W}, 18
        s_add_u32 s{self.sA}, s{self.sA}, s{self.sB}
        s_mul_i32 s{self.sLds}, s{W}, {self.KREG}
        s_mov_b32 s{self.sTile}, 0""")
        R = self.sRot
        if self.rot == 0: a(f"s_mov_b32 s{R}, 0")
        elif self.rot == 2: a(f"s_lshl_b32 s{R}, s2, 2\ns_add_u32 s{R}, s{R}, s{W}\ns_and_b32 s{R}, s{R}, 63\ns_lshl_b32 s{R}, s{R}, 12")
        elif self.rot == 3: a(f"s_lshr_b32 s{R}, s2, 3\ns_lshl_b32 s{R}, s{R}, 2\ns_add_u32 s{R}, s{R}, s{W}\ns_and_b32 s{R}, s{R}, 63\ns_lshl_b32 s{R}, s{R}, 12")
        a(f"s_lshl_b32 s{self.sB}, s{BH}, 13")
        a("s_waitcnt lgkmcnt(0)")
        K, V, Q, Ou, Ws, Db = self.sK, self.sV, self.sQ, self.sOut, self.sWs, self.sDbg
        a(f"s_add_u32 s{K}, s6, s{self.sA}\ns_addc_u32 s{K+1}, s7, 0\ns_mov_b32 s{K+2}, {1<<18}\ns_mov_b32 s{K+3}, 0x20000")
        def s_q():
            a(f"s_add_u32 s{Q}, s4, s{self.sB}\ns_addc_u32 s{Q+1}, s5, 0\ns_mov_b32 s{Q+2}, 8192\ns_mov_b32 s{Q+3}, 0x20000")
            a(f"s_mul_i32 s{self.sD}, s{W}, {2*self.ROW2}\ns_add_u32 m0, s{self.sD}, {self.QB}\ns_lshl_b32 s{self.sT}, s{W}, 11")
            self.vm(("Q", 0, 0, 0), f"buffer_load_dwordx4 v{self.vKg}, {self.srd(Q)}, s{self.sT} offen lds")
            a(f"s_add_u32 m0, s{self.sD}, {self.QB + self.KPAD}\ns_nop 0")
            self.vm(("Q", 0, 0, 0), f"buffer_load_dwordx4 v{self.vKg}, {self.srd(Q)}, s{self.sT} offen offset:1024 lds")
        def s_fill2(which):
            if self.nofill: return
            Z = self.vSt2
            for i in range(4): a(f"v_mov_b32 v{Z+i}, s{self.sSent}")
            for u in which:
                if u >= self.filln: continue
                if u < 4: self.vm(("F", 0, 0, 0), f"buffer_store_dwordx4 v[{Z}:{Z+3}], v{self.vW16}, {self.srd(Ws)}, s{self.sPO} offen offset:{u*1024} {self.fillflags}")
                else: self.vm(("F", 0, 0, 0), f"buffer_store_dwordx2 v[{Z}:{Z+1}], v{self.vW8}, {self.srd(Ws)}, s{self.sPS} offen {self.fillflags}")
        def s_fill():
            a(f"s_mov_b32 s{Ws}, s14\ns_mov_b32 s{Ws+1}, s15\ns_mov_b32 s{Ws+2}, {16<<20}\ns_mov_b32 s{Ws+3}, 0x20000")
            a(f"s_mov_b32 s{self.sSent}, {SENT:#x}")
            a(f"s_lshl_b32 s{self.sD}, s{BH}, 4\ns_add_u32 s{self.sD}, s{self.sD}, s{W}")
            for i in range(4):
                x = self.sPS + i
                a(f"""s_xor_b32 s{x}, s{Sp}, {i}
                s_lshl_b32 s{x}, s{x}, 2
                s_add_u32 s{x}, s{x}, s{self.sD}
                s_lshl_b32 s{self.sPO+i}, s{x}, 12
                s_lshl_b32 s{x}, s{x}, 9
                s_add_u32 s{x}, s{x}, {4<<20}""")
            a(f"v_lshlrev_b32 v{self.vW16}, 4, v{ln}\nv_lshlrev_b32 v{self.vW8}, 3, v{ln}")
            if self.fill == "start": s_fill2(range(5))
            if self.proto == "B":
                a(f"""s_lshl_b32 s{self.sD}, s{BH}, 8
                s_add_u32 s{self.sD}, s{self.sD}, {6<<20}
                s_lshl_b32 s{self.sFl}, s{Sp}, 2
                s_add_u32 s{self.sFl}, s{self.sFl}, s{self.sD}
                s_cmp_eq_u32 s{W}, 0
                s_cselect_b32 s{self.sT}, s{self.sFl}, 0x2000000
                s_lshl_b32 s{self.sFlP}, s{W}, 4
                s_add_u32 s{self.sFl}, s{self.sFl}, s{self.sFlP}
                s_add_u32 s{self.sFlP}, s{self.sFlP}, s{self.sD}
                v_mov_b32 v{self.vSt2}, 0
                s_mov_b64 exec, 15""")
                self.vm(("F", 0, 0, 0), f"buffer_store_dword v{self.vSt2}, v{self.vW16}, {self.srd(Ws)}, s{self.sT} offen sc1")
                a("s_mov_b64 exec, -1")
            a(f"""s_cmp_eq_u32 s{W}, 0
            s_cselect_b32 s{self.sD}, 0, 16
            s_add_u32 s{self.sD}, s{self.sD}, {self.ROLE}
            v_mov_b32 v{self.vRo}, s{self.sD}
            v_mov_b32 v{self.vRr}, {self.ROLE}
            v_mov_b32 v{self.vTk}, -1
            ds_write_b32 v{self.vRo}, v{self.vTk}
            v_mov_b32 v{self.vTk}, 0
            ds_write_b32 v{self.vRo}, v{self.vTk} offset:4
            ds_write_b32 v{self.vRo}, v{self.vTk} offset:8
            s_mul_i32 s{self.sD}, s{BH}, {4 if self.ctr == "dbg" else self.cstride}
            s_cmp_eq_u32 s{W}, 0
            s_cselect_b32 s{self.sD}, s{self.sD}, 0x1000000
            v_mov_b32 v{self.vTa}, s{self.sD}
            v_mov_b32 v{self.vTk}, 1""")
        def s_v():
            a(f"s_add_u32 s{V}, s8, s{self.sA}\ns_addc_u32 s{V+1}, s9, 0\ns_mov_b32 s{V+2}, {1<<18}\ns_mov_b32 s{V+3}, 0x20000")
            a(f"""v_and_b32 v{T0}, 15, v{ln}
            v_lshrrev_b32 v{T1}, 4, v{ln}
            v_lshlrev_b32 v{T2}, 2, v{T1}
            s_movk_i32 s{self.sD}, 0x3102
            v_lshrrev_b32 v{T2}, v{T2}, s{self.sD}
            v_and_b32 v{T2}, 3, v{T2}
            v_lshlrev_b32 v{self.vVg}, 9, v{T2}
            v_lshl_add_u32 v{self.vVg}, v{T0}, 4, v{self.vVg}""")
            a(f"""v_lshlrev_b32 v{self.vOut}, 9, v{T0}
            v_lshl_add_u32 v{self.vOut}, v{T1}, 6, v{self.vOut}
            s_lshr_b32 s{self.sOutOff}, s{W}, 1
            s_lshl_b32 s{self.sOutOff}, s{self.sOutOff}, 8
            s_and_b32 s{self.sD}, s{W}, 1
            s_lshl_b32 s{self.sD}, s{self.sD}, 3
            s_add_u32 s{self.sOutOff}, s{self.sOutOff}, s{self.sD}""")
        def s_kr():
            a(f"""v_lshrrev_b32 v{T1}, 4, v{ln}
            s_movk_i32 s{self.sD}, 0x3102
            v_bfe_u32 v{T2}, v{ln}, 2, 2
            v_lshlrev_b32 v{T2}, 2, v{T2}
            v_lshrrev_b32 v{T2}, v{T2}, s{self.sD}
            v_and_b32 v{T2}, 3, v{T2}
            v_and_b32 v{T0}, 3, v{ln}
            v_lshl_add_u32 v{T0}, v{T0}, 2, v{T2}
            v_lshrrev_b32 v{T2}, 1, v{T0}
            v_mul_u32_u24 v{T2}, {self.ROW2}, v{T2}
            v_and_b32 v{T0}, 1, v{T0}
            v_lshl_add_u32 v{T2}, v{T0}, 9, v{T2}
            v_xor_b32 v{T0}, v{T1}, v{T0}
            v_lshl_add_u32 v{T2}, v{T0}, 4, v{T2}
            v_add_u32 v{self.vKr}, s{self.sLds}, v{T2}""")
            for j in range(1, 4): a(f"v_add_u32 v{self.vKr+j}, {64*j}, v{self.vKr}")
            a(f"""v_bfe_u32 v{T2}, v{ln}, 1, 3
            v_mul_u32_u24 v{T2}, {self.ROW2}, v{T2}
            v_and_b32 v{T0}, 1, v{ln}
            v_lshl_add_u32 v{T2}, v{T0}, 9, v{T2}
            v_xor_b32 v{T0}, v{T1}, v{T0}
            v_lshl_add_u32 v{T2}, v{T0}, 4, v{T2}
            v_add_u32 v{self.vA0}, {self.QB}, v{T2}""")
        def s_misc():
            a(f"s_add_u32 s{Ou}, s10, s{self.sB}\ns_addc_u32 s{Ou+1}, s11, 0\ns_mov_b32 s{Ou+2}, 8192\ns_mov_b32 s{Ou+3}, 0x20000")
            if self.ctr == "dbg":
                a(f"s_mov_b32 s{Db}, s12\ns_mov_b32 s{Db+1}, s13\ns_mov_b32 s{Db+2}, 256\ns_mov_b32 s{Db+3}, 0x20000")
            else:
                a(f"s_add_u32 s{Db}, s14, {12<<20}\ns_addc_u32 s{Db+1}, s15, 0\ns_mov_b32 s{Db+2}, {1<<20}\ns_mov_b32 s{Db+3}, 0x20000")
            a(f"s_mov_b32 s{self.sC}, 0x3db8aa3b")
            a(f"s_mov_b32 s{self.sLo}, 0x05040100\ns_mov_b32 s{self.sHi}, 0x07060302")
            a(f"v_mov_b32 v{self.vM}, 0xff800000\nv_mov_b32 v{self.vL}, 0\nv_mov_b32 v{self.vAl+1}, 0")
            a(f"s_mov_b32 s{self.sPolled}, 0\ns_mov_b32 s{self.sSpin}, 0x40000")
            a(f"s_lshl_b32 s{self.sSh}, s{Sp}, 3\ns_lshl_b32 s{self.sInc}, 1, s{self.sSh}\ns_mov_b32 s{self.sMode}, 0\ns_mov_b64 vcc, 0")
            if self.stamp:
                a(f"v_mov_b32 v3, 0\ns_nop 1\nv_writelane_b32 v3, s{self.sT+2}, 0\ns_mov_b32 s{self.sSl}, 8")
                self.stampw(1)
        def s_zero(lo, hi):
            def f():
                for i in range(lo, hi): a(f"v_mov_b32 v{self.vO+i}, 0")
            return f
        def s_bar():
            self.need(lambda x: x[0] in "QF")
            a("s_waitcnt lgkmcnt(0)\ns_barrier")
            for j in range(8):
                a(f"ds_read_b128 a[{self.aQ+4*j}:{self.aQ+4*j+3}], v{self.vA0} offset:{j*64}")
        r0 = self.Rk - 1
        extra = {}
        extra.setdefault(r0, []).extend([s_q, s_fill, s_v, s_kr, s_misc, s_zero(0, 64)])
        extra.setdefault(self.barslot, []).append(s_bar)
        self.kphase(0, extra=extra)
        NT = self.NT
        if self.fill == "start":
            self.vphase(0); self.kphase(1)
        else:
            def ready():
                self.need(lambda x: x[0] == "F")
                a(f"v_mov_b32 v{self.vSt2+4}, 1\nds_add_u32 v{self.vRr}, v{self.vSt2+4} offset:4")
            def ready1():
                a("s_mov_b64 exec, 1"); ready(); a("s_mov_b64 exec, -1")
            self.vphase(0, extra={0: lambda: s_fill2([0]), 1: lambda: s_fill2([1]), 2: lambda: s_fill2([2]), 3: lambda: s_fill2([3]), 13: lambda: s_fill2([4])})
            self.kphase(1, extra={15: [ready1]})
        self.tstamp()
        base = self.pos
        q0 = [(t[0], t[1], t[2], t[3] - base) for t in self.q]
        peel = max(0, len(self.tail) - 1)
        a(f"s_mov_b32 s{self.sCnt}, {NT-2-peel}")
        a(".p2align 6\nL_loop:")
        self.vphase(1); self.kphase(2); self.tstamp()
        q1 = [(t[0], t[1] - 1, t[2], t[3] - self.pos) for t in self.q]
        assert q0 == q1, (q0, q1)
        a(f"s_sub_u32 s{self.sCnt}, s{self.sCnt}, 1\ns_cmp_lg_u32 s{self.sCnt}, 0\ns_cbranch_scc1 L_loop")
        self.q = [(t[0], NT - 1 - peel, t[2], t[3]) for t in self.q]
        for n in range(NT - 1 - peel, NT - 1):
            self.vphase(n); self.kphase(n + 1); self.tstamp()
        self.stampw(3)
        self.FINAL = (NT if self.lock else 1) * 0x01010101
        def tick():
            if self.fill != "start":
                a(f"""L_rdy:
                ds_read_b32 v{self.vA1}, v{self.vRr} offset:4
                s_waitcnt lgkmcnt(0)
                v_readfirstlane_b32 s{self.sA}, v{self.vA1}
                s_nop 0
                s_cmp_lg_u32 s{self.sA}, 4
                s_cbranch_scc1 L_rdy""")
            a(f"v_mov_b32 v{self.vTk}, s{self.sInc}\ns_mov_b64 exec, 1")
            self.vm(("A", 0, 0, 0), f"buffer_atomic_add v{self.vTk}, v{self.vTa}, {self.srd(Db)}, 0 offen sc0")
            a("s_mov_b64 exec, -1")
        def role_w():
            self.need(lambda x: x[0] == "A")
            a(f"s_mov_b64 exec, 1\nds_write_b32 v{self.vRo}, v{self.vTk}\ns_mov_b64 exec, -1")
        if self.proto == "A":
            self.vphase(NT - 1)
        elif self.proto == "B":
            rw = min(15, self.tickslot + self.rV(NT - 1) + 1)
            def role_r():
                a(f"ds_read_b32 v{self.vA1}, v{self.vRr}")
            self.vphase(NT - 1, extra={self.tickslot: tick}, post={rw: role_w, 14: role_r} if rw != 14 else {14: lambda: (role_w(), role_r())})
            a(f"""L_role:
            s_waitcnt lgkmcnt(0)
            v_readfirstlane_b32 s{self.sRole}, v{self.vA1}
            s_nop 0
            s_cmp_lg_u32 s{self.sRole}, -1
            s_cbranch_scc1 L_role_ok
            ds_read_b32 v{self.vA1}, v{self.vRr}
            s_branch L_role
            L_role_ok:
            s_add_u32 s{self.sRole}, s{self.sRole}, s{self.sInc}
            s_cmp_eq_u32 s{self.sRole}, {self.FINAL:#x}
            s_cselect_b32 s{self.sPolled}, 2, 0
            s_cselect_b32 s{self.sD}, s{self.sFlP}, 0x2000000
            s_mov_b64 exec, 1""")
            self.vm(("P", 0, 0, 0), f"buffer_load_dwordx4 v[{self.vFp}:{self.vFp+3}], v{self.vW16}, {self.srd(Ws)}, s{self.sD} offen sc1")
            a("s_mov_b64 exec, -1")
        else:
            rw = min(15, self.tickslot + self.rV(NT - 1) + 1)
            self.vphase(NT - 1, extra={self.tickslot: tick}, post={rw: role_w})
        self.stampw(2)
        for c in self.pv_chunks(NT - 1): c()
        a("L_pv_done:")
        if self.proto == "B":
            self.q = []
            self.flagstep("a")
        assert not self.q
        self.tstamp()
        self.stampw(4)
        self.epilogue()
        a("L_end:\ns_endpgm")
        a(f""".section .rodata,"a"
.p2align 6
.amdhsa_kernel {NAME}
.amdhsa_next_free_vgpr 288
.amdhsa_next_free_sgpr 84
.amdhsa_accum_offset 256
.amdhsa_group_segment_fixed_size 0
.amdhsa_kernarg_size 48
.amdhsa_user_sgpr_count 2
.amdhsa_user_sgpr_kernarg_segment_ptr 1
.amdhsa_system_sgpr_workgroup_id_x 1
.amdhsa_float_denorm_mode_32 3
.end_amdhsa_kernel""")
        return "\n".join(self.L) + "\n"

    def epilogue(self):
        a = self.a
        T0, T1, T2, M, Lr, ln = self.vT0, self.vT1, self.vT2, self.vM, self.vL, self.vLane
        O = self.vO; R = self.vVb; X = self.vT; F = self.vP; St = self.vS; P2 = self.vKb; St2 = self.vSt2
        A0, A1 = self.vA0, self.vA1
        W = self.sW
        a(f"""v_mov_b32 v{T1}, v{Lr}
        v_add_u32 v{A0}, s{self.sLds}, v{self.vW16}
        s_lshl_b32 s{self.sA}, s{W}, 9
        v_permlane16_swap_b32 v{Lr}, v{T1}
        s_add_u32 s{self.sA}, s{self.sA}, {self.STAT}
        v_add_f32 v{Lr}, v{Lr}, v{T1}
        v_mov_b32 v{T1}, v{Lr}
        v_add_u32 v{A1}, s{self.sA}, v{self.vW8}
        v_add_u32 v{T2}, {self.STAT}, v{self.vW8}
        v_permlane32_swap_b32 v{Lr}, v{T1}
        v_add_f32 v{Lr}, v{Lr}, v{T1}
        s_cmp_ge_u32 s{W}, 2
        s_cbranch_scc1 L_c23
        s_cmp_eq_u32 s{W}, 1
        s_cbranch_scc1 L_c1""")
        for w in [0, 1, 2, 3]:
            if w == 1: a("L_c1:")
            if w == 2: a(f"L_c23:\ns_cmp_eq_u32 s{W}, 3\ns_cbranch_scc1 L_c3")
            if w == 3: a("L_c3:")
            a(f"ds_write_b64 v{A1}, v[{M}:{M+1}]")
            for u in range(16):
                if u >> 2 != w: a(f"ds_write_b128 v{A0}, v[{O+4*u}:{O+4*u+3}] offset:{u*1024}")
            a(f"v_mov_b32 v{T0}, v{T2}")
            a("s_waitcnt lgkmcnt(0)\ns_barrier")
            if self.proto == "S": a(f"ds_read_b32 v{A1}, v{self.vRr}")
            for k in range(4): a(f"ds_read_b64 v[{St+2*k}:{St+2*k+1}], v{T0} offset:{k*512}")
            oth = [k for k in range(4) if k != w]
            for n_, k in enumerate(oth[:2]):
                for u in range(4):
                    r = R + n_*16 + u*4
                    a(f"ds_read_b128 v[{r}:{r+3}], v{self.vW16} offset:{k*self.KREG + (4*w+u)*1024}")
            if self.proto == "B": self.flagstep(f"b{w}")
            if self.proto == "S":
                a(f"s_waitcnt lgkmcnt(12)\nv_readfirstlane_b32 s{self.sRole}, v{A1}\ns_nop 0\ns_add_u32 s{self.sRole}, s{self.sRole}, s{self.sInc}")
                a(f"s_cmp_lg_u32 s{self.sRole}, {self.FINAL:#x}\ns_cbranch_scc1 L_np{w}")
                self.polls(False)
                a(f"s_mov_b32 s{self.sPolled}, 1\nL_np{w}:")
            a("s_waitcnt lgkmcnt(8)")
            k = oth[2]
            for u in range(4):
                r = R + 32 + u*4
                a(f"ds_read_b128 v[{r}:{r+3}], v{self.vW16} offset:{k*self.KREG + (4*w+u)*1024}")
            self.factors(St, F)
            self.vmul(X, F + w, O + 16*w)
            for n_, k in enumerate(oth):
                a(f"s_waitcnt lgkmcnt({8-4*n_})")
                self.vfma(X, F + k, R + 16*n_)
            if w < 3: a("s_branch L_cj")
        a("L_cj:")
        self.stampw(5)
        Ws = self.srd(self.sWs)
        def publish():
            for u in range(4): a(f"buffer_store_dwordx4 v[{X+4*u}:{X+4*u+3}], v{self.vW16}, {Ws}, s{self.sPO} offen offset:{u*1024} {self.stflags}")
            a(f"buffer_store_dwordx2 v[{M}:{M+1}], v{self.vW8}, {Ws}, s{self.sPS} offen {self.stflags}")
        if self.proto == "A":
            publish()
            a(f"""v_mov_b32 v{self.vTk}, s{self.sInc}
            v_mov_b32 v{St2}, v{M}
            v_mov_b32 v{St2+1}, v{Lr}
            s_waitcnt vmcnt(0)
            s_barrier
            s_cmp_lg_u32 s{W}, 0
            s_cbranch_scc1 L_notw0
            s_mov_b64 exec, 1
            buffer_atomic_add v{self.vTk}, v{self.vTa}, {self.srd(self.sDbg)}, 0 offen sc0
            s_waitcnt vmcnt(0)
            ds_write_b32 v{self.vRr}, v{self.vTk}
            s_mov_b64 exec, -1
            s_waitcnt lgkmcnt(0)
            L_notw0:
            s_barrier
            ds_read_b32 v{A1}, v{self.vRr}
            s_waitcnt lgkmcnt(0)
            v_readfirstlane_b32 s{self.sRole}, v{A1}
            s_nop 0
            s_add_u32 s{self.sRole}, s{self.sRole}, s{self.sInc}""")
            self.stampw(6)
            a(f"s_cmp_lg_u32 s{self.sRole}, {self.FINAL:#x}\ns_cbranch_scc1 L_done\ns_mov_b32 s{self.sPolled}, 1")
            self.polls(False)
            a("s_waitcnt vmcnt(0)")
        elif self.proto == "B":
            a(f"s_cmp_lg_u32 s{self.sPolled}, 0\ns_cbranch_scc1 L_last")
            publish()
            a(f"v_mov_b32 v{T0}, 1\ns_waitcnt vmcnt(0)\ns_mov_b64 exec, 1")
            a(f"buffer_store_dword v{T0}, v{self.vW16}, {Ws}, s{self.sFl} offen sc1\ns_mov_b64 exec, -1")
            self.stampw(6)
            a("s_branch L_done")
            a(f"L_last:\nv_mov_b32 v{St2}, v{M}\nv_mov_b32 v{St2+1}, v{Lr}")
            self.flagstep("c", loop=True)
            a("s_waitcnt vmcnt(0)")
            self.stampw(6)
        else:
            a(f"s_cmp_eq_u32 s{self.sPolled}, 1\ns_cbranch_scc1 L_last")
            a(f"s_sub_u32 s{self.sA}, s{self.sSent}, 1")
            for i in range(16): a(f"v_min_i32 v{X+i}, s{self.sA}, v{X+i}")
            a(f"v_min_i32 v{M}, s{self.sA}, v{M}\nv_min_i32 v{Lr}, s{self.sA}, v{Lr}")
            publish()
            self.stampw(6)
            a("s_branch L_done")
            a(f"L_last:\nv_mov_b32 v{St2}, v{M}\nv_mov_b32 v{St2+1}, v{Lr}\ns_mov_b32 s{self.sSpin}, 0x40000")
            a("L_chk:\ns_waitcnt vmcnt(0)")
            regs = [St2 + 2 + i for i in range(6)] + [P2 + i for i in range(48)]
            a(f"v_max3_i32 v{T0}, v{regs[0]}, v{regs[1]}, v{regs[2]}\nv_max3_i32 v{T1}, v{regs[3]}, v{regs[4]}, v{regs[5]}")
            for i in range(6, 54, 4):
                a(f"v_max3_i32 v{T0}, v{T0}, v{regs[i]}, v{regs[i+1]}\nv_max3_i32 v{T1}, v{T1}, v{regs[i+2]}, v{regs[i+3]}")
            a(f"""v_max_i32 v{T0}, v{T0}, v{T1}
            v_cmp_eq_u32 vcc, s{self.sSent}, v{T0}
            s_cbranch_vccz L_have
            s_sub_u32 s{self.sSpin}, s{self.sSpin}, 1
            s_cmp_eq_u32 s{self.sSpin}, 0
            s_cbranch_scc1 L_have""")
            self.polls(False)
            a("s_branch L_chk\nL_have:")
            self.stampw(6)
        self.factors(St2, F)
        a(f"v_rcp_f32 v{T0}, v{Lr}\ns_nop 0")
        for w in range(4): a(f"v_mul_f32 v{F+w}, v{F+w}, v{T0}")
        self.vmul(X, F, X); self.vmul(P2, F + 1, P2); self.vmul(P2 + 16, F + 2, P2 + 16); self.vmul(P2 + 32, F + 3, P2 + 32)
        self.vadd(X, X, P2); self.vadd(P2 + 16, P2 + 16, P2 + 32); self.vadd(X, X, P2 + 16)
        for r in range(4):
            a(f"v_cvt_pk_bf16_f32 v{R+2*r}, v{X+r}, v{X+4+r}")
            a(f"v_cvt_pk_bf16_f32 v{R+2*r+1}, v{X+8+r}, v{X+12+r}")
            a(f"buffer_store_dwordx2 v[{R+2*r}:{R+2*r+1}], v{self.vOut}, {self.srd(self.sOut)}, s{self.sOutOff} offen offset:{r*16} {self.outflags}")
        a("L_done:")
        if self.stamp:
            a("s_waitcnt vmcnt(0)")
            self.stampw(7)
            a(f"""s_lshl_b32 s{self.sA}, s2, 2
            s_add_u32 s{self.sA}, s{self.sA}, s{W}
            s_lshl_b32 s{self.sA}, s{self.sA}, 8
            s_add_u32 s{self.sA}, s{self.sA}, {8<<20}
            s_getreg_b32 s{self.sB}, hwreg(HW_REG_XCC_ID)
            s_lshl_b32 s{self.sD}, s{self.sPolled}, 8
            s_add_u32 s{self.sD}, s{self.sD}, s{self.sMode}
            s_sub_u32 s{self.sSpin}, 0x40000, s{self.sSpin}
            s_lshl_b32 s{self.sSpin}, s{self.sSpin}, 16
            s_add_u32 s{self.sD}, s{self.sD}, s{self.sSpin}
            v_writelane_b32 v3, s{self.sB}, 62
            v_writelane_b32 v3, s{self.sD}, 63
            v_lshlrev_b32 v{T0}, 2, v{ln}
            buffer_store_dword v3, v{T0}, {Ws}, s{self.sA} offen
            s_waitcnt vmcnt(0)""")

    def bsel(self, f):
        return (f"v[{f}:{f+1}]", 0) if f % 2 == 0 else (f"v[{f-1}:{f}]", 1)
    def vmul(self, d, f, s_):
        if not self.pk:
            for i in range(16): self.a(f"v_mul_f32 v{d+i}, v{f}, v{s_+i}")
            return
        p, o = self.bsel(f)
        for i in range(0, 16, 2): self.a(f"v_pk_mul_f32 v[{d+i}:{d+i+1}], v[{s_+i}:{s_+i+1}], {p} op_sel:[0,{o}] op_sel_hi:[1,{o}]")
    def vfma(self, d, f, s_):
        if not self.pk:
            for i in range(16): self.a(f"v_fmac_f32 v{d+i}, v{f}, v{s_+i}")
            return
        p, o = self.bsel(f)
        for i in range(0, 16, 2): self.a(f"v_pk_fma_f32 v[{d+i}:{d+i+1}], v[{s_+i}:{s_+i+1}], {p}, v[{d+i}:{d+i+1}] op_sel:[0,{o},0] op_sel_hi:[1,{o},1]")
    def vadd(self, d, x, y):
        if not self.pk:
            for i in range(16): self.a(f"v_add_f32 v{d+i}, v{x+i}, v{y+i}")
            return
        for i in range(0, 16, 2): self.a(f"v_pk_add_f32 v[{d+i}:{d+i+1}], v[{x+i}:{x+i+1}], v[{y+i}:{y+i+1}]")
    def factors(self, St, F):
        a = self.a
        M, Lr = self.vM, self.vL
        a(f"v_max3_f32 v{M}, v{St}, v{St+2}, v{St+4}\nv_max_f32 v{M}, v{M}, v{St+6}")
        for w in range(4): a(f"v_sub_f32 v{F+w}, v{St+2*w}, v{M}")
        for w in range(4): a(f"v_mul_f32 v{F+w}, s{self.sC}, v{F+w}")
        for w in range(4): a(f"v_exp_f32 v{F+w}, v{F+w}")
        a("s_nop 0")
        for w in range(4): a(f"v_mul_f32 v{St+2*w+1}, v{F+w}, v{St+2*w+1}")
        a(f"v_add_f32 v{St+1}, v{St+1}, v{St+3}\nv_add_f32 v{St+5}, v{St+5}, v{St+7}\nv_add_f32 v{Lr}, v{St+1}, v{St+5}")

if __name__ == "__main__":
    import ast
    out = sys.argv[1]
    kw = {}
    for s in sys.argv[2:]:
        k, v = s.split("=", 1)
        try: v = ast.literal_eval(v)
        except Exception: pass
        kw[k] = v
    open(out, "w").write(Gen(**kw).build())
```

```python
import sys, math
NAME = "standalone__gqa_softmax__sampling_kernel"

HEADER = """; GQA decode attention: B=8 Hq=16 Hkv=8 Sq=8 Sk=8192 D=256, bf16 in / bf16 out.
"""
OOB = 0x2000000

class Gen:
    def __init__(self, R=5, flags="nt", rot=3, stamp=0, mapping="lo", hlast=False, tail=((6, 8),), outflags="",
                 barslot=None, tickslot=15, stflags="sc1", proto="Y", pk=True, p2=False, quart="r", nspread=False, nwhen="epoch", lock=0, ck=(8, 16), cv=(16, 16), fastat=3, slowat=0, lockfrom=1, layout="L1", xb="g3", lo=(), wgx=0, shi=(), slo=(), xset=0x55, probe=0):
        self.R = R; self.flags = flags; self.rot = rot; self.stamp = stamp; self.mapping = mapping
        self.Rk = self.Rv = R
        self.tail = list(tail or [])
        self.hlast = hlast; self.outflags = outflags; self.stflags = stflags
        self.barslot = barslot if barslot is not None else min(15, 2 * self.Rk + 1)
        self.tickslot = tickslot; self.proto = proto; self.pk = pk; self.p2 = p2; self.quart = quart; self.probe = probe; self.shi = set(shi); self.slo = set(slo); self.xset = xset; self.wgx = wgx; self.lo = set(lo); self.layout = layout; self.xb = xb; self.span = (1 << 20) if layout == "L1" else (1 << 18)
        self.lock = lock; self.ck = ck; self.cv = cv; self.fastat = fastat; self.slowat = slowat; self.lockfrom = lockfrom
        self.nspread = nspread; self.nwhen = nwhen if proto in 'YD' else ''
        if proto == 'B' and tickslot >= 15: self.tickslot = 0
        self.L = []; self.q = []; self.pos = 0; self.nlab = 0
        self.NT = 16
        self.vKg, self.vVg = 1, 2
        self.vKr = 4
        self.vM, self.vL = 8, 9
        self.vAl = 10
        self.vT0, self.vT1, self.vT2 = 12, 13, 14
        self.vMc = 15
        self.vS = 16; self.vP = 24; self.vLane = 28
        self.vA0, self.vA1 = 29, 30
        self.vT = 32; self.vO = 48; self.vVb = 112
        self.vKb = 176
        self.vSt2 = 224
        self.vTk, self.vTa = 240, 241
        self.vN = 242
        self.vFp = 244
        self.vW12 = 249
        self.vRo, self.vRr, self.vW16, self.vW8, self.vOut = 250, 251, 252, 253, 254
        self.aQ = 0
        self.sK, self.sV, self.sQ, self.sOut, self.sWs, self.sDbg = 16, 20, 24, 28, 32, 36
        self.sW, self.sBH, self.sSp = 40, 41, 42
        self.sTile, self.sRole, self.sCnt = 43, 44, 45
        self.sC, self.sLo, self.sHi = 46, 47, 48
        self.sA, self.sB, self.sD = 49, 50, 51
        self.sPO = 52
        self.sOutOff, self.sNonce = 56, 57
        self.sRot, self.sLds = 58, 59
        self.sT = 60
        self.sOff = 64
        self.sSl, self.sState, self.sSpin, self.sMy = 68, 69, 70, 71
        self.sPS = 72
        self.sFl, self.sFlP = 76, 77
        self.sEp = 78
        self.sMode, self.sPg, self.sPv = 79, 80, 81
        self.vPa, self.vPd = 248, 255
        self.KPAD = 32
        self.ROW2 = 1024 + self.KPAD
        self.KREG = 16 * self.ROW2
        self.QB = 4 * self.KREG
        self.STAT = self.QB + 8 * self.ROW2
        self.ROLE = self.STAT + 4 * 512
        self.LDS = self.ROLE + 64
        self.FINAL = 4
    def a(self, s):
        for x in s.split("\n"):
            x = x.strip()
            if x: self.L.append(x)
    def srd(self, s): return f"s[{s}:{s+3}]"
    def vm(self, tag, text):
        self.a(text); self.q.append(tag)
    def need(self, pred):
        idx = max((i for i, t in enumerate(self.q) if pred(t)), default=-1)
        if idx < 0: return
        n = len(self.q) - 1 - idx
        assert n <= 63, n
        self.a(f"s_waitcnt vmcnt({n})")
        self.q = self.q[idx+1:]
    def window(self, R, ctl=False, slot=None):
        if slot in self.shi or slot in self.slo:
            big = R + 1 if slot in self.shi else R
            idx = max((i for i, t in enumerate(self.q) if t[0] in "KV" and t[3] <= self.pos - (big - 1)), default=-1)
            n1 = len(self.q) - 1 - idx
            self.need(lambda t: t[0] in "KV" and t[3] <= self.pos - big)
            self.nlab += 1
            self.a(f"s_cbranch_vccnz L_w{self.nlab}\ns_waitcnt vmcnt({n1})\nL_w{self.nlab}:")
            return
        if not ctl:
            p = self.pos - R
            self.need(lambda t: t[0] in "KV" and t[3] <= p)
            return
        def cnt(r):
            idx = max((i for i, t in enumerate(self.q) if t[0] in "KV" and t[3] <= self.pos - r), default=-1)
            return None if idx < 0 else len(self.q) - 1 - idx
        n0, n1 = cnt(R), cnt(R - 1)
        self.need(lambda t: t[0] in "KV" and t[3] <= self.pos - R - 1)
        self.nlab += 1
        lab = f"L_w{self.nlab}"
        self.a(f"""s_cbranch_vccnz {lab}
        s_waitcnt vmcnt({n0})
        s_bitcmp1_b32 s{self.sMode}, 0
        s_cbranch_scc0 {lab}
        s_waitcnt vmcnt({n1})
        {lab}:""")
    def offsets(self):
        a = self.a
        if self.layout == "L1":
            a(f"""s_lshr_b32 s{self.sOff}, s{self.sTile}, 1
            s_lshl_b32 s{self.sOff}, s{self.sOff}, 17
            s_and_b32 s{self.sOff+1}, s{self.sTile}, 1
            s_lshl_b32 s{self.sOff+1}, s{self.sOff+1}, 14
            s_or_b32 s{self.sOff}, s{self.sOff}, s{self.sOff+1}
            s_xor_b32 s{self.sOff}, s{self.sOff}, s{self.sRot}
            s_xor_b32 s{self.sOff+1}, s{self.sOff}, 0x8000
            s_xor_b32 s{self.sOff+2}, s{self.sOff}, 0x10000
            s_xor_b32 s{self.sOff+3}, s{self.sOff}, 0x18000
            s_add_u32 s{self.sTile}, s{self.sTile}, 1""")
            return
        for i in range(4):
            if i: a(f"s_add_u32 s{self.sOff+i}, s{self.sTile}, {i*4096}\ns_xor_b32 s{self.sOff+i}, s{self.sOff+i}, s{self.sRot}")
            else: a(f"s_xor_b32 s{self.sOff}, s{self.sTile}, s{self.sRot}")
        a(f"s_add_u32 s{self.sTile}, s{self.sTile}, 16384")
    def rK(self, n):
        i = n - (self.NT - len(self.tail))
        return self.tail[i][0] if i >= 0 else self.Rk
    def rV(self, n):
        i = n - (self.NT - len(self.tail))
        return self.tail[i][1] if i >= 0 else self.Rv
    def loadK(self, n, i):
        self.a(f"s_add_u32 m0, s{self.sLds}, {(i>>2)*4096 + i*self.KPAD}")
        self.window(self.rK(n) - (i in self.lo and n < self.NT - len(self.tail)), self.lock and 0 < n < self.NT - 1 and self.ck[0] <= i < self.ck[1], i if 0 < n <= self.NT - 1 - len(self.tail) else None)
        if self.L[-1].startswith("s_add_u32 m0"): self.a("s_nop 0")
        self.vm(("K", n, i, self.pos), f"buffer_load_dwordx4 v{self.vKg}, {self.srd(self.sK)}, s{self.sOff + (i>>2)} offen offset:{(i&3)*1024} {self.flags} lds")
        self.pos += 1
    def vorder(self, n):
        if self.hlast and n == self.NT - 1:
            return [(t, r, h) for h in range(2) for t in range(2) for r in range(4)]
        return [(t, r, h) for t in range(2) for r in range(4) for h in range(2)]
    def vreg(self, t, r, h): return self.vVb + h*32 + (t*4 + r)*4
    def loadV(self, n, i):
        t, r, h = self.vorder(n)[i]
        g = self.vreg(t, r, h)
        self.window(self.rV(n) - ((16 + i) in self.lo and n < self.NT - len(self.tail)), self.lock and 0 < n < self.NT - 1 and self.cv[0] <= i < self.cv[1], 16 + i if 0 < n <= self.NT - 1 - len(self.tail) else None)
        self.vm(("V", n, h, self.pos), f"buffer_load_dwordx4 v[{g}:{g+3}], v{self.vVg}, {self.srd(self.sV)}, s{self.sOff + 2*t + (r>>1)} offen offset:{(r&1)*2048 + h*256} {self.flags}")
        self.pos += 1
    def qk_chunks(self, n):
        a = self.a; S = self.vS; Kb = self.vKb
        T0, T1, T2, M, Lr, Al, Mc, O = self.vT0, self.vT1, self.vT2, self.vM, self.vL, self.vAl, self.vMc, self.vO
        def rd(t):
            def f():
                self.need(lambda x: x[0] == "K" and x[1] == n)
                for j in range(8):
                    r = Kb + t*32 + j*4
                    a(f"ds_read_b128 v[{r}:{r+3}], v{self.vKr + (j&3)} offset:{(j>>2)*256 + t*8*self.ROW2}")
            return f
        def mm(t):
            def f():
                a(f"s_waitcnt lgkmcnt({8 if t == 0 else 0})")
                for j in range(8):
                    k = Kb + t*32 + j*4; c = "0" if j == 0 else f"v[{S+4*t}:{S+4*t+3}]"
                    a(f"v_mfma_f32_16x16x32_bf16 v[{S+4*t}:{S+4*t+3}], v[{k}:{k+3}], a[{self.aQ+4*j}:{self.aQ+4*j+3}], {c}")
            return f
        def mx():
            a(f"""s_nop 7
            v_max3_f32 v{T0}, v{S}, v{S+1}, v{S+2}
            v_max3_f32 v{T1}, v{S+3}, v{S+4}, v{S+5}
            v_max3_f32 v{T0}, v{T0}, v{S+6}, v{S+7}
            v_max3_f32 v{T0}, v{T0}, v{T1}, v{M}
            v_mov_b32 v{T1}, v{T0}
            s_nop 1
            v_permlane16_swap_b32 v{T0}, v{T1}
            v_max_f32 v{T0}, v{T0}, v{T1}
            v_mov_b32 v{T1}, v{T0}
            s_nop 1
            v_permlane32_swap_b32 v{T0}, v{T1}
            v_max_f32 v{T0}, v{T0}, v{T1}
            v_sub_f32 v{T2}, v{M}, v{T0}
            v_mul_f32 v{Mc}, s{self.sC}, v{T0}
            v_mul_f32 v{T2}, s{self.sC}, v{T2}
            v_mov_b32 v{M}, v{T0}
            v_exp_f32 v{Al}, v{T2}""")
        def ex():
            for i in range(8): a(f"v_fma_f32 v{S+i}, v{S+i}, s{self.sC}, -v{Mc}")
            for i in range(8): a(f"v_exp_f32 v{S+i}, v{S+i}")
        def pk():
            for j in range(4): a(f"v_cvt_pk_bf16_f32 v{self.vP+j}, v{S+2*j}, v{S+2*j+1}")
            a(f"""v_add_f32 v{T0}, v{S}, v{S+1}
            v_add_f32 v{T1}, v{S+2}, v{S+3}
            v_add_f32 v{T2}, v{S+4}, v{S+5}
            v_add_f32 v{S+6}, v{S+6}, v{S+7}
            v_add_f32 v{T0}, v{T0}, v{T1}
            v_add_f32 v{T2}, v{T2}, v{S+6}
            v_add_f32 v{T0}, v{T0}, v{T2}
            v_fma_f32 v{Lr}, v{Lr}, v{Al}, v{T0}""")
        def rs(lo, hi):
            def f():
                for i in range(lo, hi, 2): a(f"v_pk_mul_f32 v[{O+i}:{O+i+1}], v[{O+i}:{O+i+1}], v[{Al}:{Al+1}] op_sel_hi:[1,0]")
            return f
        return [rd(0), rd(1), mm(0), mm(1), mx, ex, rs(0, 32), pk, rs(32, 64)]
    def perms(self, p):
        h, x = p >> 2, p & 3
        T = self.vT + (p & 1) * 8
        for j in range(4):
            t, r = j >> 1, 2 * (j & 1)
            lo, hi = self.vreg(t, r, h) + x, self.vreg(t, r + 1, h) + x
            self.a(f"v_perm_b32 v{T+j}, v{hi}, v{lo}, s{self.sLo}")
            self.a(f"v_perm_b32 v{T+4+j}, v{hi}, v{lo}, s{self.sHi}")
    def pv(self, p):
        h, x = p >> 2, p & 3
        T = self.vT + (p & 1) * 8
        for o in range(2):
            d = self.vO + (h * 8 + 2 * x + o) * 4
            self.a(f"v_mfma_f32_16x16x32_bf16 v[{d}:{d+3}], v[{T+4*o}:{T+4*o+3}], v[{self.vP}:{self.vP+3}], v[{d}:{d+3}]")
    def pv_chunks(self, n):
        def mk(p):
            def f():
                if p == 0:
                    self.need(lambda x: x[0] == "V" and x[1] == n and x[2] == 0); self.perms(0)
                if p + 1 < 8:
                    if p + 1 == 4: self.need(lambda x: x[0] == "V" and x[1] == n)
                    self.perms(p + 1)
                self.pv(p)
            return f
        return [mk(p) for p in range(8)]
    def spread(self, chunks, first, last=15):
        out = [[] for _ in range(16)]
        room = last + 1 - first
        for i, c in enumerate(chunks):
            out[first + (i if len(chunks) <= room else i * room // len(chunks))].append(c)
        return out
    def vphase(self, n, extra=None, post=None):
        ch = self.spread(self.qk_chunks(n), min(self.rV(n), 8) - 1)
        for i in range(16):
            self.loadV(n, i)
            if extra and i in extra: extra[i]()
            for c in ch[i]: c()
            if post and i in post: post[i]()
    def kphase(self, n, extra=None):
        ch = self.spread(self.pv_chunks(n - 1), min(self.rK(n), 8) - 1) if n > 0 else [[] for _ in range(16)]
        self.offsets()
        if self.lock and 0 < n < self.NT - 1:
            extra = dict(extra or {})
            a = self.a
            def pub():
                a(f"s_add_u32 s{self.sPv}, s{self.sPv}, 1\nv_mov_b32 v{self.vTk}, s{self.sPv}\ns_mov_b64 exec, 1")
                self.vm(("A", 0, 0, 0), f"buffer_store_dword v{self.vTk}, off, {self.srd(self.sWs)}, s{self.sPg} sc1")
                a("s_mov_b64 exec, 15")
                self.vm(("A", 0, 0, 0), f"buffer_load_dword v{self.vPd}, v{self.vPa}, {self.srd(self.sWs)}, 0 offen sc1")
                a("s_mov_b64 exec, -1")
            def rank():
                self.need(lambda x: x[0] == "A")
                B, D = self.sB, self.sD
                a(f"""v_subrev_u32 v{self.vPd}, s{self.sPv}, v{self.vPd}
                v_cmp_gt_u32 s[{self.sT}:{self.sT+1}], 32, v{self.vPd}
                s_lshl_b32 s{B}, 1, s{self.sSp}
                s_andn2_b32 s{B}, 15, s{B}
                s_and_b32 s{B}, s{B}, s{self.sT}
                s_bcnt1_i32_b32 s{B}, s{B}
                s_cmp_lt_u32 s{B}, {self.slowat + 1}
                s_cselect_b32 s{D}, 1, 0
                s_cmp_ge_u32 s{B}, {self.fastat}
                s_cselect_b32 s{D}, 2, s{D}
                v_mov_b32 v{self.vTk}, s{D}
                s_mov_b64 exec, 1
                ds_write_b32 v{self.vRo}, v{self.vTk} offset:8
                s_mov_b64 exec, -1""")
            def mode_r():
                a(f"ds_read_b32 v{self.vA1}, v{self.vRr} offset:8")
            def mode_s():
                a(f"""s_waitcnt lgkmcnt(0)
                v_readfirstlane_b32 s{self.sMode}, v{self.vA1}
                s_nop 0
                s_bitcmp1_b32 s{self.sMode}, 1
                s_cselect_b64 vcc, -1, 0""")
            extra.setdefault(0, []).append(pub)
            extra.setdefault(self.rK(n) + 1, []).append(rank)
            c0 = min(self.ck[0], 16)
            extra.setdefault(c0 - 2, []).append(mode_r)
            extra.setdefault(c0 - 1, []).append(mode_s)
        for i in range(16):
            self.loadK(n, i)
            if extra and i in extra:
                for c in extra[i]: c()
            for c in ch[i]: c()
    def tstamp(self):
        if not self.stamp: return
        self.a(f"s_memrealtime s[{self.sT}:{self.sT+1}]\ns_waitcnt lgkmcnt(0)\ns_mov_b32 m0, s{self.sSl}\ns_add_u32 s{self.sSl}, s{self.sSl}, 1\nv_writelane_b32 v3, s{self.sT}, m0")
    def stampw(self, slot):
        if not self.stamp: return
        self.a(f"s_memrealtime s[{self.sT}:{self.sT+1}]\ns_waitcnt lgkmcnt(0)\nv_writelane_b32 v3, s{self.sT}, {slot}")
    def fetch(self):
        Ws = self.srd(self.sWs)
        for i in range(1, 4):
            r = self.vSt2 + 4*i
            if self.proto in "YD": self.a(f"buffer_load_dwordx3 v[{r}:{r+2}], v{self.vW12}, {Ws}, s{self.sPS+i} offen sc1")
            else: self.a(f"buffer_load_dwordx2 v[{r}:{r+1}], v{self.vW8}, {Ws}, s{self.sPS+i} offen sc1")
        for i in range(1, 4):
            for u in range(4):
                r = self.vKb + (i-1)*16 + u*4
                self.a(f"buffer_load_dwordx4 v[{r}:{r+3}], v{self.vW16}, {Ws}, s{self.sPO+i} offen offset:{u*1024} sc1")
    def check(self):
        a = self.a
        T = [self.vN, self.vN + 1, self.vTa]
        for k in range(9):
            for i in range(3):
                rec = [self.vKb + 16*i + j for j in range(16)] + [self.vSt2 + 4*(i+1), self.vSt2 + 4*(i+1) + 1]
                a(f"v_add3_u32 v{T[i]}, {'s%d' % self.sNonce if k == 0 else 'v%d' % T[i]}, v{rec[2*k]}, v{rec[2*k+1]}")
        for i in range(3): a(f"v_xor_b32 v{T[i]}, v{T[i]}, v{self.vSt2 + 4*(i+1) + 2}")
        a(f"v_or3_b32 v{T[0]}, v{T[0]}, v{T[1]}, v{T[2]}\nv_cmp_ne_u32 vcc, 0, v{T[0]}")
    def step(self, tag, loop=False):
        a = self.a
        a(f"s_cmp_lg_u32 s{self.sState}, 2\ns_cbranch_scc1 L_fs{tag}\nL_fl{tag}:\ns_waitcnt vmcnt(0)")
        if self.proto == "B":
            Fp = self.vFp; T = self.vTa
            a(f"""v_add3_u32 v{T}, v{Fp}, v{Fp+1}, v{Fp+2}
            v_add_u32 v{T}, v{T}, v{Fp+3}
            s_nop 0
            v_readfirstlane_b32 s{self.sA}, v{T}
            s_nop 0
            s_cmp_eq_u32 s{self.sA}, 3
            s_cbranch_scc1 L_fg{tag}""")
        else:
            self.check()
            a(f"s_cbranch_vccz L_fg{tag}")
        if loop:
            a(f"s_sub_u32 s{self.sSpin}, s{self.sSpin}, 1\ns_cmp_eq_u32 s{self.sSpin}, 0\ns_cbranch_scc1 L_fg{tag}")
        elif self.stamp:
            a(f"s_sub_u32 s{self.sSpin}, s{self.sSpin}, 1")
        if self.proto == "B":
            a(f"s_mov_b64 exec, 1\nbuffer_load_dwordx4 v[{self.vFp}:{self.vFp+3}], v{self.vW16}, {self.srd(self.sWs)}, s{self.sFlP} offen sc1\ns_mov_b64 exec, -1")
        else:
            self.fetch()
        a(f"s_branch {'L_fl' if loop else 'L_fs'}{tag}\nL_fg{tag}:")
        if self.proto == "B": self.fetch()
        a(f"s_mov_b32 s{self.sState}, 1\nL_fs{tag}:")

    def build(self):
        a = self.a
        self.L.append(HEADER + f"; @launch grid=(256,1,1) block=(256,1,1) lds={self.LDS}")
        a('.amdgcn_target "amdgcn-amd-amdhsa--gfx950"\n.text')
        a(f".globl {NAME}\n.p2align 8\n.type {NAME},@function\n{NAME}:")
        a("s_cmp_ge_u32 s2, 256\ns_cbranch_scc1 L_end")
        a("s_load_dwordx8 s[4:11], s[0:1], 0\ns_load_dwordx4 s[12:15], s[0:1], 32")
        if self.wgx: a(f"s_xor_b32 s2, s2, {self.wgx}")
        if self.stamp: a(f"s_memrealtime s[{self.sT+2}:{self.sT+3}]")
        ln = self.vLane; T0, T1, T2 = self.vT0, self.vT1, self.vT2
        W, BH, Sp = self.sW, self.sBH, self.sSp
        a(f"v_lshrrev_b32 v1, 6, v0\nv_and_b32 v{ln}, 63, v0")
        a(f"v_readfirstlane_b32 s{W}, v1")
        if self.mapping == "lo": a(f"s_lshr_b32 s{BH}, s2, 2\ns_and_b32 s{Sp}, s2, 3")
        else: a(f"s_and_b32 s{BH}, s2, 63\ns_lshr_b32 s{Sp}, s2, 6")
        a(f"""v_lshrrev_b32 v{T0}, 5, v{ln}
        v_xor_b32 v{self.vKg}, v{T0}, v{ln}
        v_lshlrev_b32 v{self.vKg}, 4, v{self.vKg}""")
        a(f"""s_lshl_b32 s{self.sA}, s{BH}, 22
        s_lshl_b32 s{self.sB}, s{Sp}, 20
        s_add_u32 s{self.sA}, s{self.sA}, s{self.sB}
        s_lshl_b32 s{self.sB}, s{W}, {18 if self.layout != "L1" else 12}
        s_add_u32 s{self.sA}, s{self.sA}, s{self.sB}
        s_mul_i32 s{self.sLds}, s{W}, {self.KREG}
        s_mov_b32 s{self.sTile}, 0""")
        R = self.sRot
        if self.layout == "L1":
            a(f"s_sub_u32 s{self.sA}, s{self.sA}, s{self.sB}\ns_mov_b32 s{R}, s{self.sB}")
            for item in filter(None, self.xb.split(",")):
                p, src = item.split(":") if ":" in item else ("14", item)
                reg = f"s{W}" if src[0] == "w" else "s2"
                a(f"s_bfe_u32 s{self.sD}, {reg}, {(1 << 16) | int(src[1])}\ns_lshl_b32 s{self.sD}, s{self.sD}, {p}\ns_xor_b32 s{R}, s{R}, s{self.sD}")
        elif self.rot == 0: a(f"s_mov_b32 s{R}, 0")
        elif self.rot == 2: a(f"s_lshl_b32 s{R}, s2, 2\ns_add_u32 s{R}, s{R}, s{W}\ns_and_b32 s{R}, s{R}, 63\ns_lshl_b32 s{R}, s{R}, 12")
        elif self.rot == 3: a(f"s_lshr_b32 s{R}, s2, 3\ns_lshl_b32 s{R}, s{R}, 2\ns_add_u32 s{R}, s{R}, s{W}\ns_and_b32 s{R}, s{R}, 63\ns_lshl_b32 s{R}, s{R}, 12")
        a(f"s_lshl_b32 s{self.sB}, s{BH}, 13")
        a("s_waitcnt lgkmcnt(0)")
        K, V, Q, Ou, Ws, Db = self.sK, self.sV, self.sQ, self.sOut, self.sWs, self.sDbg
        if self.probe:
            offs = [0, 1<<12, 1<<13, 3<<12, 1<<14, 1<<20, 1<<21, (1<<21)+(1<<13), 1<<26, 1<<27, (1<<27)+(1<<13), (1<<27)+(1<<12), 255<<20, (255<<20)+(1<<13), 129<<20, (129<<20)+(1<<13)]
            a(f"s_cmp_lg_u32 s2, {self.probe - 1}\ns_cbranch_scc1 L_noprobe\ns_cmp_lg_u32 s{W}, 0\ns_cbranch_scc1 L_noprobe")
            a(f"s_mov_b32 s{K}, s6\ns_mov_b32 s{K+1}, s7\ns_mov_b32 s{K+2}, 0x10000000\ns_mov_b32 s{K+3}, 0x20000")
            a(f"s_mov_b32 s{V}, s8\ns_mov_b32 s{V+1}, s9\ns_mov_b32 s{V+2}, 0x10000000\ns_mov_b32 s{V+3}, 0x20000")
            a(f"s_mov_b32 s{Db}, s12\ns_mov_b32 s{Db+1}, s13\ns_mov_b32 s{Db+2}, 256\ns_mov_b32 s{Db+3}, 0x20000\ns_mov_b64 exec, 1")
            for i, o in enumerate(offs):
                for bi, srd in enumerate((K, V)):
                    a(f"s_mov_b32 s70, {o ^ 0x78000}\nbuffer_load_dword v40, off, {self.srd(srd)}, s70\ns_waitcnt vmcnt(0)\ns_mov_b32 s71, 0xfff")
                    for ln_ in range(6):
                        a(f"s_mov_b32 s70, {o + 128 + ln_ * 640}\ns_memtime s[72:73]\ns_waitcnt lgkmcnt(0)\nbuffer_load_dword v40, off, {self.srd(srd)}, s70 nt\ns_waitcnt vmcnt(0)\ns_memtime s[74:75]\ns_waitcnt lgkmcnt(0)\ns_sub_u32 s74, s74, s72\ns_min_u32 s71, s71, s74")
                    a(f"s_lshl_b32 s71, s71, {8 + 12*bi}\nv_mov_b32 v41, s71\ns_mov_b32 s70, {4*i}\nbuffer_atomic_add v41, off, {self.srd(Db)}, s70\ns_waitcnt vmcnt(0)")
            a("s_mov_b64 exec, -1\nL_noprobe:")
        a(f"s_add_u32 s{K}, s6, s{self.sA}\ns_addc_u32 s{K+1}, s7, 0\ns_mov_b32 s{K+2}, {1<<20 if self.layout == "L1" else 1<<18}\ns_mov_b32 s{K+3}, 0x20000")
        def s_q():
            a(f"s_add_u32 s{Q}, s4, s{self.sB}\ns_addc_u32 s{Q+1}, s5, 0\ns_mov_b32 s{Q+2}, 8192\ns_mov_b32 s{Q+3}, 0x20000")
            a(f"s_mul_i32 s{self.sD}, s{W}, {2*self.ROW2}\ns_add_u32 m0, s{self.sD}, {self.QB}\ns_lshl_b32 s{self.sT}, s{W}, 11")
            self.vm(("Q", 0, 0, 0), f"buffer_load_dwordx4 v{self.vKg}, {self.srd(Q)}, s{self.sT} offen lds")
            a(f"s_add_u32 m0, s{self.sD}, {self.QB + self.KPAD}\ns_nop 0")
            self.vm(("Q", 0, 0, 0), f"buffer_load_dwordx4 v{self.vKg}, {self.srd(Q)}, s{self.sT} offen offset:1024 lds")
        def s_ws():
            a(f"s_mov_b32 s{Ws}, s14\ns_mov_b32 s{Ws+1}, s15\ns_mov_b32 s{Ws+2}, {16<<20}\ns_mov_b32 s{Ws+3}, 0x20000")
            a(f"s_lshl_b32 s{self.sD}, s{BH}, 4\ns_add_u32 s{self.sD}, s{self.sD}, s{W}")
            for i in range(4):
                x = self.sPS + i
                a(f"""s_xor_b32 s{x}, s{Sp}, {i}
                s_lshl_b32 s{x}, s{x}, 2
                s_add_u32 s{x}, s{x}, s{self.sD}
                s_lshl_b32 s{self.sPO+i}, s{x}, 12
                s_lshl_b32 s{x}, s{x}, 10
                s_add_u32 s{x}, s{x}, {4<<20}""")
            a(f"v_lshlrev_b32 v{self.vW16}, 4, v{ln}\nv_lshlrev_b32 v{self.vW8}, 3, v{ln}\nv_mul_u32_u24 v{self.vW12}, 12, v{ln}")
            if self.nwhen == "epoch":
                a(f"""s_lshl_b32 s{self.sEp}, s{BH}, 14
                s_add_u32 s{self.sEp}, s{self.sEp}, {(4<<20) + 896}
                s_mov_b64 exec, 1""")
                self.vm(("N", 0, 0, 0), f"buffer_load_dword v{self.vN}, off, {self.srd(Ws)}, s{self.sEp} sc1")
                a("s_mov_b64 exec, -1")
            if self.proto == "B":
                a(f"""s_lshl_b32 s{self.sD}, s{BH}, 8
                s_add_u32 s{self.sD}, s{self.sD}, {6<<20}
                s_lshl_b32 s{self.sFl}, s{Sp}, 2
                s_add_u32 s{self.sFl}, s{self.sFl}, s{self.sD}
                s_cmp_eq_u32 s{W}, 0
                s_cselect_b32 s{self.sT}, s{self.sFl}, {OOB}
                s_lshl_b32 s{self.sFlP}, s{W}, 4
                s_add_u32 s{self.sFl}, s{self.sFl}, s{self.sFlP}
                s_add_u32 s{self.sFlP}, s{self.sFlP}, s{self.sD}
                v_mov_b32 v{self.vN}, 0
                s_mov_b64 exec, 15""")
                self.vm(("F", 0, 0, 0), f"buffer_store_dword v{self.vN}, v{self.vW16}, {self.srd(Ws)}, s{self.sT} offen sc1")
                a("s_mov_b64 exec, -1")
            a(f"""s_cmp_eq_u32 s{W}, 0
            s_cselect_b32 s{self.sD}, 0, 16
            s_add_u32 s{self.sD}, s{self.sD}, {self.ROLE}
            v_mov_b32 v{self.vRo}, s{self.sD}
            v_mov_b32 v{self.vRr}, {self.ROLE}
            v_mov_b32 v{self.vTk}, -1
            ds_write_b32 v{self.vRo}, v{self.vTk}
            s_lshl_b32 s{self.sD}, s{BH}, 2
            s_cmp_eq_u32 s{W}, 0
            s_cselect_b32 s{self.sD}, s{self.sD}, 0x1000
            v_mov_b32 v{self.vTa}, s{self.sD}""")
            if self.lock:
                a(f"""v_mov_b32 v{self.vTk}, 0
                ds_write_b32 v{self.vRo}, v{self.vTk} offset:8
                s_lshl_b32 s{self.sD}, s{BH}, 9
                s_add_u32 s{self.sD}, s{self.sD}, {5<<20}
                s_cmp_eq_u32 s{W}, 0
                s_cselect_b32 s{self.sD}, s{self.sD}, {OOB}
                s_lshl_b32 s{self.sPg}, s{Sp}, 7
                s_add_u32 s{self.sPg}, s{self.sPg}, s{self.sD}
                v_lshlrev_b32 v{self.vPa}, 7, v{ln}
                v_add_u32 v{self.vPa}, s{self.sD}, v{self.vPa}
                s_mov_b32 s{self.sMode}, 0
                s_mov_b64 vcc, 0""")
            if self.nspread: a(f"s_bfe_u32 s{self.sMy}, s2, 0x30003\ns_add_u32 s{self.sMy}, s{self.sMy}, 4")
            else: a(f"s_mov_b32 s{self.sMy}, 8")
            a(f"s_cmp_eq_u32 s{W}, 0\ns_cselect_b32 s{self.sMy}, s{self.sMy}, -1")
        def s_v():
            a(f"s_add_u32 s{V}, s8, s{self.sA}\ns_addc_u32 s{V+1}, s9, 0\ns_mov_b32 s{V+2}, {1<<20 if self.layout == "L1" else 1<<18}\ns_mov_b32 s{V+3}, 0x20000")
            a(f"""v_and_b32 v{T0}, 15, v{ln}
            v_lshrrev_b32 v{T1}, 4, v{ln}
            v_lshlrev_b32 v{T2}, 2, v{T1}
            s_movk_i32 s{self.sD}, 0x3102
            v_lshrrev_b32 v{T2}, v{T2}, s{self.sD}
            v_and_b32 v{T2}, 3, v{T2}
            v_lshlrev_b32 v{self.vVg}, 9, v{T2}
            v_lshl_add_u32 v{self.vVg}, v{T0}, 4, v{self.vVg}""")
            a(f"""v_lshlrev_b32 v{self.vOut}, 9, v{T0}
            v_lshl_add_u32 v{self.vOut}, v{T1}, 6, v{self.vOut}
            s_lshr_b32 s{self.sOutOff}, s{W}, 1
            s_lshl_b32 s{self.sOutOff}, s{self.sOutOff}, 8
            s_and_b32 s{self.sD}, s{W}, 1
            s_lshl_b32 s{self.sD}, s{self.sD}, {5 if self.quart == "r" else 3}
            s_add_u32 s{self.sOutOff}, s{self.sOutOff}, s{self.sD}""")
        def s_kr():
            a(f"""v_lshrrev_b32 v{T1}, 4, v{ln}
            s_movk_i32 s{self.sD}, 0x3102
            v_bfe_u32 v{T2}, v{ln}, 2, 2
            v_lshlrev_b32 v{T2}, 2, v{T2}
            v_lshrrev_b32 v{T2}, v{T2}, s{self.sD}
            v_and_b32 v{T2}, 3, v{T2}
            v_and_b32 v{T0}, 3, v{ln}
            v_lshl_add_u32 v{T0}, v{T0}, 2, v{T2}
            v_lshrrev_b32 v{T2}, 1, v{T0}
            v_mul_u32_u24 v{T2}, {self.ROW2}, v{T2}
            v_and_b32 v{T0}, 1, v{T0}
            v_lshl_add_u32 v{T2}, v{T0}, 9, v{T2}
            v_xor_b32 v{T0}, v{T1}, v{T0}
            v_lshl_add_u32 v{T2}, v{T0}, 4, v{T2}
            v_add_u32 v{self.vKr}, s{self.sLds}, v{T2}""")
            for j in range(1, 4): a(f"v_add_u32 v{self.vKr+j}, {64*j}, v{self.vKr}")
            a(f"""v_bfe_u32 v{T2}, v{ln}, 1, 3
            v_mul_u32_u24 v{T2}, {self.ROW2}, v{T2}
            v_and_b32 v{T0}, 1, v{ln}
            v_lshl_add_u32 v{T2}, v{T0}, 9, v{T2}
            v_xor_b32 v{T0}, v{T1}, v{T0}
            v_lshl_add_u32 v{T2}, v{T0}, 4, v{T2}
            v_add_u32 v{self.vA0}, {self.QB}, v{T2}""")
        def s_misc():
            a(f"s_add_u32 s{Ou}, s10, s{self.sB}\ns_addc_u32 s{Ou+1}, s11, 0\ns_mov_b32 s{Ou+2}, 8192\ns_mov_b32 s{Ou+3}, 0x20000")
            a(f"s_mov_b32 s{Db}, s12\ns_mov_b32 s{Db+1}, s13\ns_mov_b32 s{Db+2}, 256\ns_mov_b32 s{Db+3}, 0x20000")
            a(f"s_mov_b32 s{self.sC}, 0x3db8aa3b")
            a(f"s_mov_b32 s{self.sLo}, 0x05040100\ns_mov_b32 s{self.sHi}, 0x07060302")
            a(f"v_mov_b32 v{self.vM}, 0xff800000\nv_mov_b32 v{self.vL}, 0\nv_mov_b32 v{self.vAl+1}, 0")
            if self.shi or self.slo:
                a(f"s_getreg_b32 s{self.sD}, hwreg(HW_REG_XCC_ID, 0, 3)\ns_lshr_b32 s{self.sD}, {self.xset}, s{self.sD}\ns_bitcmp1_b32 s{self.sD}, 0\ns_cselect_b64 vcc, -1, 0")
            a(f"s_mov_b32 s{self.sState}, 0\ns_mov_b32 s{self.sSpin}, 0x40000\ns_mov_b32 s{self.sNonce}, 0")
            if self.stamp:
                a(f"v_mov_b32 v3, 0\ns_nop 1\nv_writelane_b32 v3, s{self.sT+2}, 0\ns_mov_b32 s{self.sSl}, 8")
                self.stampw(1)
        def s_zero():
            for i in range(64): a(f"v_mov_b32 v{self.vO+i}, 0")
        def tag1(cond):
            if cond: a(f"s_cmp_lg_u32 s{self.sCnt}, s{self.sMy}\ns_cbranch_scc1 L_t1")
            a(f"""s_memrealtime s[{self.sT}:{self.sT+1}]
            s_waitcnt lgkmcnt(0)
            s_lshl_b32 s{self.sNonce}, s{self.sT}, 3
            s_or_b32 s{self.sNonce}, s{self.sNonce}, 8
            v_mov_b32 v{self.vN}, s{self.sNonce}
            v_mov_b32 v{self.vN+1}, 0
            s_mov_b64 exec, 1""")
            t = f"buffer_atomic_cmpswap v[{self.vN}:{self.vN+1}], v{self.vTa}, {self.srd(Db)}, 0 offen sc0"
            if cond: a(t)
            else: self.vm(("N", 0, 0, 0), t)
            a("s_mov_b64 exec, -1")
            if cond: a("L_t1:")
        def tag2(cond):
            if cond: a(f"s_cmp_lg_u32 s{self.sCnt}, s{self.sMy}\ns_cbranch_scc1 L_t2")
            else: self.need(lambda x: x[0] == "N")
            a(f"""v_readfirstlane_b32 s{self.sA}, v{self.vN}
            s_nop 0
            s_cmp_eq_u32 s{self.sA}, 0
            s_cselect_b32 s{self.sNonce}, s{self.sNonce}, s{self.sA}
            s_and_b32 s{self.sNonce}, s{self.sNonce}, -8
            v_mov_b32 v{self.vN}, s{self.sNonce}
            s_mov_b64 exec, 1
            ds_write_b32 v{self.vRo}, v{self.vN} offset:4
            s_mov_b64 exec, -1""")
            if cond: a("L_t2:")
        def s_bar():
            self.need(lambda x: x[0] in "QF")
            if self.proto in "YD" and self.nwhen == "start": tag2(False)
            if self.nwhen == "epoch":
                self.need(lambda x: x[0] == "N")
                a(f"v_readfirstlane_b32 s{self.sNonce}, v{self.vN}\ns_nop 0\ns_add_u32 s{self.sNonce}, s{self.sNonce}, 1")
                if self.lock: a(f"s_lshl_b32 s{self.sPv}, s{self.sNonce}, 5")
            a("s_waitcnt lgkmcnt(0)\ns_barrier")
            for j in range(8):
                a(f"ds_read_b128 a[{self.aQ+4*j}:{self.aQ+4*j+3}], v{self.vA0} offset:{j*64}")
        extra = {}
        first = [s_q, s_ws, s_misc]
        if self.proto in "YD" and self.nwhen == "start": first.append(lambda: tag1(False))
        extra.setdefault(self.Rk - 1, []).extend(first + [s_v, s_kr, s_zero])
        extra.setdefault(self.barslot, []).append(s_bar)
        self.kphase(0, extra=extra)
        NT = self.NT
        self.vphase(0); self.kphase(1); self.tstamp()
        base = self.pos
        q0 = [(t[0], t[1], t[2], t[3] - base) for t in self.q]
        peel = max(0, len(self.tail) - 1)
        assert NT - 2 - peel >= 11
        a(f"s_mov_b32 s{self.sCnt}, {NT-2-peel}")
        a(".p2align 6\nL_loop:")
        ex = None
        if self.proto == "Y" and self.nwhen == "loop":
            ex = {0: [lambda: tag1(True)], 2 * self.Rk + 2: [lambda: tag2(True)]}
        self.vphase(1); self.kphase(2, extra=ex); self.tstamp()
        q1 = [(t[0], t[1] - 1, t[2], t[3] - self.pos) for t in self.q]
        assert q0 == q1, (q0, q1)
        a(f"s_sub_u32 s{self.sCnt}, s{self.sCnt}, 1\ns_cmp_lg_u32 s{self.sCnt}, 0\ns_cbranch_scc1 L_loop")
        self.q = [(t[0], NT - 1 - peel, t[2], t[3]) for t in self.q]
        for n in range(NT - 1 - peel, NT - 1):
            self.vphase(n); self.kphase(n + 1); self.tstamp()
        self.stampw(3)
        def tick():
            if self.proto == "Y" and self.nwhen == "tick": tag1(False)
            a(f"v_mov_b32 v{self.vTk}, 1\ns_mov_b64 exec, 1")
            self.vm(("A", 0, 0, 0), f"buffer_atomic_add v{self.vTk}, v{self.vTa}, {self.srd(Db)}, 0 offen sc0")
            a("s_mov_b64 exec, -1")
        def role_w():
            self.need(lambda x: x[0] == "A")
            if self.proto == "Y" and self.nwhen == "tick": tag2(False)
            a(f"s_mov_b64 exec, 1\nds_write_b32 v{self.vRo}, v{self.vTk}\ns_mov_b64 exec, -1")
        def role_r():
            a(f"ds_read_b32 v{self.vA1}, v{self.vRr}\nds_read_b32 v{self.vT2}, v{self.vRr} offset:4")
        self.late = self.tickslot >= 15 and self.proto == "Y"
        if self.proto == "A":
            self.vphase(NT - 1)
        elif self.proto == "D":
            self.vphase(NT - 1, post={14: lambda: a(f"ds_read_b32 v{self.vT2}, v{self.vRr} offset:4")})
            a(f"s_waitcnt lgkmcnt(0)\nv_readfirstlane_b32 s{self.sNonce}, v{self.vT2}")
        elif self.late:
            assert self.proto == "Y" and not self.p2
            self.vphase(NT - 1, post={15: tick})
        else:
            rw = min(14, self.tickslot + self.rV(NT - 1) + 1)
            self.vphase(NT - 1, extra={self.tickslot: tick}, post={rw: role_w, 14: role_r} if rw != 14 else {14: lambda: (role_w(), role_r())})
            a(f"""L_role:
            s_waitcnt lgkmcnt(0)
            v_readfirstlane_b32 s{self.sRole}, v{self.vA1}
            v_readfirstlane_b32 s{self.sA if self.nwhen == "epoch" else self.sNonce}, v{self.vT2}
            s_cmp_lg_u32 s{self.sRole}, -1
            s_cbranch_scc1 L_role_ok""")
            role_r()
            a(f"""s_branch L_role
            L_role_ok:
            s_and_b32 s{self.sRole}, s{self.sRole}, 7
            s_cmp_eq_u32 s{self.sRole}, 3
            s_cselect_b32 s{self.sState}, 2, 0""")
            if self.proto == "B":
                a(f"s_cselect_b32 s{self.sD}, s{self.sFlP}, {OOB}\ns_mov_b64 exec, 1")
                self.vm(("P", 0, 0, 0), f"buffer_load_dwordx4 v[{self.vFp}:{self.vFp+3}], v{self.vW16}, {self.srd(Ws)}, s{self.sD} offen sc1")
                a("s_mov_b64 exec, -1")
        self.stampw(2)
        for c in self.pv_chunks(NT - 1): c()
        if self.late: role_w()
        if self.proto == "B":
            self.q = []
            self.step("a")
        if self.proto == "Y" and self.p2:
            a(f"s_cmp_lg_u32 s{self.sState}, 2\ns_cbranch_scc1 L_p2")
            self.fetch()
            a("L_p2:")
        assert not self.q
        self.tstamp()
        self.stampw(4)
        self.epilogue()
        a("L_end:\ns_endpgm")
        a(f""".section .rodata,"a"
.p2align 6
.amdhsa_kernel {NAME}
.amdhsa_next_free_vgpr 288
.amdhsa_next_free_sgpr 88
.amdhsa_accum_offset 256
.amdhsa_group_segment_fixed_size 0
.amdhsa_kernarg_size 48
.amdhsa_user_sgpr_count 2
.amdhsa_user_sgpr_kernarg_segment_ptr 1
.amdhsa_system_sgpr_workgroup_id_x 1
.amdhsa_float_denorm_mode_32 3
.end_amdhsa_kernel""")
        return "\n".join(self.L) + "\n"

    def epilogue(self):
        a = self.a
        T0, T1, T2, M, Lr, ln = self.vT0, self.vT1, self.vT2, self.vM, self.vL, self.vLane
        O = self.vO; R = self.vVb; X = self.vT; F = self.vP; St = self.vS; P2 = self.vKb; St2 = self.vSt2
        A0, A1 = self.vA0, self.vA1
        W = self.sW
        a(f"""v_mov_b32 v{T1}, v{Lr}
        v_add_u32 v{A0}, s{self.sLds}, v{self.vW8 if self.quart == "r" else self.vW16}
        s_lshl_b32 s{self.sA}, s{W}, 9
        v_permlane16_swap_b32 v{Lr}, v{T1}
        s_add_u32 s{self.sA}, s{self.sA}, {self.STAT}
        v_add_f32 v{Lr}, v{Lr}, v{T1}
        v_mov_b32 v{T1}, v{Lr}
        v_add_u32 v{A1}, s{self.sA}, v{self.vW8}
        v_add_u32 v{T2}, {self.STAT}, v{self.vW8}
        v_permlane32_swap_b32 v{Lr}, v{T1}
        v_add_f32 v{Lr}, v{Lr}, v{T1}
        s_cmp_ge_u32 s{W}, 2
        s_cbranch_scc1 L_c23
        s_cmp_eq_u32 s{W}, 1
        s_cbranch_scc1 L_c1""")
        for w in range(4):
            if w == 1: a("L_c1:")
            if w == 2: a(f"L_c23:\ns_cmp_eq_u32 s{W}, 3\ns_cbranch_scc1 L_c3")
            if w == 3: a("L_c3:")
            a(f"ds_write_b64 v{A1}, v[{M}:{M+1}]")
            hw, pw = w >> 1, w & 1
            oth = [k for k in range(4) if k != w]
            if self.quart == "r":
                for u in range(16):
                    for p in range(2):
                        if (u >> 3, p) != (hw, pw): a(f"ds_write_b64 v{A0}, v[{O+4*u+2*p}:{O+4*u+2*p+1}] offset:{(2*u+p)*512}")
                a(f"v_add_u32 v{A0}, {2*self.KREG}, v{self.vW8}")
                def rd(n_, k, lo=0, hi=8):
                    for e in range(lo, hi):
                        r = R + n_*16 + 2*e
                        a(f"ds_read_b64 v[{r}:{r+1}], v{self.vW8 if k < 2 else A0} offset:{(k & 1)*self.KREG + (2*(8*hw+e)+pw)*512}")
                nrd = 8
                own = [O + 4*(8*hw + (i >> 1)) + 2*pw + (i & 1) for i in range(16)]
            else:
                for u in range(16):
                    if u >> 2 != w: a(f"ds_write_b128 v{A0}, v[{O+4*u}:{O+4*u+3}] offset:{u*1024}")
                def rd(n_, k):
                    for u in range(4):
                        r = R + n_*16 + u*4
                        a(f"ds_read_b128 v[{r}:{r+3}], v{self.vW16} offset:{k*self.KREG + (4*w+u)*1024}")
                nrd = 4
                own = [O + 16*w + i for i in range(16)]
            a("s_waitcnt lgkmcnt(0)\ns_barrier")
            if self.late: a(f"ds_read_b32 v{A1}, v{self.vRr}\nds_read_b32 v{T0}, v{self.vRr} offset:4")
            for k in range(4): a(f"ds_read_b64 v[{St+2*k}:{St+2*k+1}], v{T2} offset:{k*512}")
            rd(0, oth[0])
            if nrd == 4: rd(1, oth[1])
            if self.late:
                a(f"""s_waitcnt lgkmcnt(12)
                v_readfirstlane_b32 s{self.sRole}, v{A1}
                v_readfirstlane_b32 s{self.sA if self.nwhen == "epoch" else self.sNonce}, v{T0}
                s_and_b32 s{self.sRole}, s{self.sRole}, 7
                s_cmp_eq_u32 s{self.sRole}, 3
                s_cselect_b32 s{self.sState}, 2, 0""")
            if self.proto not in "AD":
                if self.proto == "Y" and not self.p2:
                    a(f"s_cmp_lg_u32 s{self.sState}, 2\ns_cbranch_scc1 L_p3{w}")
                    self.fetch()
                    a(f"L_p3{w}:")
                else:
                    self.step(f"b{w}")
            a("s_waitcnt lgkmcnt(8)")
            if nrd == 8: rd(1, oth[1], 0, 7)
            self.factors(St, 2, F)
            self.vmul([X + i for i in range(16)], F + w, own)
            if nrd == 4:
                rd(2, oth[2])
                for n_, k in enumerate(oth):
                    a(f"s_waitcnt lgkmcnt({8-4*n_})")
                    self.vfma(X, F + k, R + 16*n_)
            else:
                a("s_waitcnt lgkmcnt(7)")
                rd(1, oth[1], 7, 8); rd(2, oth[2], 0, 7)
                self.vfma(X, F + oth[0], R)
                a("s_waitcnt lgkmcnt(7)")
                rd(2, oth[2], 7, 8)
                self.vfma(X, F + oth[1], R + 16)
                a("s_waitcnt lgkmcnt(0)")
                self.vfma(X, F + oth[2], R + 32)
            if w < 3: a("s_branch L_cj")
        a("L_cj:")
        self.stampw(5)
        Ws = self.srd(self.sWs)
        def publish():
            for u in range(4): a(f"buffer_store_dwordx4 v[{X+4*u}:{X+4*u+3}], v{self.vW16}, {Ws}, s{self.sPO} offen offset:{u*1024} {self.stflags}")
            if self.proto in "YD":
                C = self.vAl
                a(f"v_add3_u32 v{C}, s{self.sNonce}, v{M}, v{Lr}")
                for k in range(8): a(f"v_add3_u32 v{C}, v{C}, v{X+2*k}, v{X+2*k+1}")
                a(f"buffer_store_dwordx3 v[{M}:{M+2}], v{self.vW12}, {Ws}, s{self.sPS} offen {self.stflags}")
            else:
                a(f"buffer_store_dwordx2 v[{M}:{M+1}], v{self.vW8}, {Ws}, s{self.sPS} offen {self.stflags}")
        if self.proto == "A":
            publish()
            a(f"""v_mov_b32 v{self.vTk}, 1
            v_mov_b32 v{St2}, v{M}
            v_mov_b32 v{St2+1}, v{Lr}
            s_waitcnt vmcnt(0)
            s_barrier
            s_cmp_lg_u32 s{W}, 0
            s_cbranch_scc1 L_notw0
            s_mov_b64 exec, 1
            buffer_atomic_add v{self.vTk}, v{self.vTa}, {self.srd(self.sDbg)}, 0 offen sc0
            s_waitcnt vmcnt(0)
            ds_write_b32 v{self.vRr}, v{self.vTk}
            s_mov_b64 exec, -1
            s_waitcnt lgkmcnt(0)
            L_notw0:
            s_barrier
            ds_read_b32 v{A1}, v{self.vRr}
            s_waitcnt lgkmcnt(0)
            v_readfirstlane_b32 s{self.sRole}, v{A1}""")
            self.stampw(6)
            a(f"s_cmp_lg_u32 s{self.sRole}, 3\ns_cbranch_scc1 L_done\ns_mov_b32 s{self.sState}, 1")
            self.fetch()
            a("s_waitcnt vmcnt(0)")
        elif self.proto == "D":
            publish()
            a(f"v_mov_b32 v{St2}, v{M}\nv_mov_b32 v{St2+1}, v{Lr}\ns_waitcnt vmcnt(0)")
            self.fetch()
            a("s_waitcnt vmcnt(0)")
            self.check()
            self.stampw(6)
            a(f"s_cbranch_vccnz L_done\ns_mov_b32 s{self.sState}, 1")
        else:
            a(f"s_cmp_lg_u32 s{self.sState}, 0\ns_cbranch_scc1 L_last")
            publish()
            if self.proto == "B":
                a(f"v_mov_b32 v{T0}, 1\ns_waitcnt vmcnt(0)\ns_mov_b64 exec, 1")
                a(f"buffer_store_dword v{T0}, v{self.vW16}, {Ws}, s{self.sFl} offen sc1\ns_mov_b64 exec, -1")
            self.stampw(6)
            a("s_branch L_done")
            a(f"L_last:\nv_mov_b32 v{St2}, v{M}\nv_mov_b32 v{St2+1}, v{Lr}")
            self.step("c", loop=True)
            if self.proto == "B": a("s_waitcnt vmcnt(0)")
            self.stampw(6)
        self.factors(St2, 4, F)
        a(f"v_rcp_f32 v{T0}, v{Lr}\ns_nop 0")
        for w in range(4): a(f"v_mul_f32 v{F+w}, v{F+w}, v{T0}")
        rg = lambda b: [b + i for i in range(16)]
        self.vmul(rg(X), F, rg(X)); self.vmul(rg(P2), F + 1, rg(P2)); self.vmul(rg(P2 + 16), F + 2, rg(P2 + 16)); self.vmul(rg(P2 + 32), F + 3, rg(P2 + 32))
        self.vadd(X, X, P2); self.vadd(P2 + 16, P2 + 16, P2 + 32); self.vadd(X, X, P2 + 16)
        Ou = self.srd(self.sOut)
        if self.quart == "r":
            for rr in range(2):
                for j in range(4): a(f"v_cvt_pk_bf16_f32 v{R+4*rr+j}, v{X+4*j+rr}, v{X+4*j+2+rr}")
                a(f"buffer_store_dwordx4 v[{R+4*rr}:{R+4*rr+3}], v{self.vOut}, {Ou}, s{self.sOutOff} offen offset:{rr*16} {self.outflags}")
        else:
            for r in range(4):
                a(f"v_cvt_pk_bf16_f32 v{R+2*r}, v{X+r}, v{X+4+r}")
                a(f"v_cvt_pk_bf16_f32 v{R+2*r+1}, v{X+8+r}, v{X+12+r}")
                a(f"buffer_store_dwordx2 v[{R+2*r}:{R+2*r+1}], v{self.vOut}, {Ou}, s{self.sOutOff} offen offset:{r*16} {self.outflags}")
        if self.nwhen == "epoch":
            a(f"""s_cmp_lg_u32 s{W}, 0
            s_cbranch_scc1 L_done
            v_mov_b32 v{T0}, s{self.sNonce}
            s_mov_b64 exec, 1
            buffer_store_dword v{T0}, off, {Ws}, s{self.sEp} sc1
            s_mov_b64 exec, -1""")
        a("L_done:")
        if self.stamp:
            a("s_waitcnt vmcnt(0)")
            self.stampw(7)
            a(f"""s_lshl_b32 s{self.sA}, s2, 2
            s_add_u32 s{self.sA}, s{self.sA}, s{W}
            s_lshl_b32 s{self.sA}, s{self.sA}, 8
            s_add_u32 s{self.sA}, s{self.sA}, {8<<20}
            s_getreg_b32 s{self.sB}, hwreg(HW_REG_XCC_ID)
            s_lshl_b32 s{self.sD}, s{self.sState}, 8
            s_sub_u32 s{self.sSpin}, 0x40000, s{self.sSpin}
            s_lshl_b32 s{self.sSpin}, s{self.sSpin}, 16
            s_add_u32 s{self.sD}, s{self.sD}, s{self.sSpin}
            v_writelane_b32 v3, s{self.sB}, 62
            v_writelane_b32 v3, s{self.sD}, 63
            v_lshlrev_b32 v{T0}, 2, v{ln}
            buffer_store_dword v3, v{T0}, {Ws}, s{self.sA} offen
            s_waitcnt vmcnt(0)""")

    def bsel(self, f):
        return (f"v[{f}:{f+1}]", 0) if f % 2 == 0 else (f"v[{f-1}:{f}]", 1)
    def vmul(self, d, f, s_):
        p, o = self.bsel(f)
        for i in range(0, 16, 2):
            assert d[i+1] == d[i] + 1 and s_[i+1] == s_[i] + 1 and d[i] % 2 == 0 and s_[i] % 2 == 0
            self.a(f"v_pk_mul_f32 v[{d[i]}:{d[i]+1}], v[{s_[i]}:{s_[i]+1}], {p} op_sel:[0,{o}] op_sel_hi:[1,{o}]")
    def vfma(self, d, f, s_):
        p, o = self.bsel(f)
        for i in range(0, 16, 2): self.a(f"v_pk_fma_f32 v[{d+i}:{d+i+1}], v[{s_+i}:{s_+i+1}], {p}, v[{d+i}:{d+i+1}] op_sel:[0,{o},0] op_sel_hi:[1,{o},1]")
    def vadd(self, d, x, y):
        for i in range(0, 16, 2): self.a(f"v_pk_add_f32 v[{d+i}:{d+i+1}], v[{x+i}:{x+i+1}], v[{y+i}:{y+i+1}]")
    def factors(self, St, k, F):
        a = self.a
        M, Lr = self.vM, self.vL
        a(f"v_max3_f32 v{M}, v{St}, v{St+k}, v{St+2*k}\nv_max_f32 v{M}, v{M}, v{St+3*k}")
        for w in range(4): a(f"v_sub_f32 v{F+w}, v{St+k*w}, v{M}")
        for w in range(4): a(f"v_mul_f32 v{F+w}, s{self.sC}, v{F+w}")
        for w in range(4): a(f"v_exp_f32 v{F+w}, v{F+w}")
        a("s_nop 0")
        for w in range(4): a(f"v_mul_f32 v{St+k*w+1}, v{F+w}, v{St+k*w+1}")
        a(f"v_add_f32 v{St+1}, v{St+1}, v{St+k+1}\nv_add_f32 v{St+2*k+1}, v{St+2*k+1}, v{St+3*k+1}\nv_add_f32 v{Lr}, v{St+1}, v{St+2*k+1}")

if __name__ == "__main__":
    import ast
    out = sys.argv[1]
    kw = {}
    for s in sys.argv[2:]:
        k, v = s.split("=", 1)
        try: v = ast.literal_eval(v)
        except Exception: pass
        kw[k] = v
    open(out, "w").write(Gen(**kw).build())
```
